```python
import torch

def _softmax(x, axis=-1):
    return torch.softmax(x, dim=axis)
def _gelu(x):
    return torch.nn.functional.gelu(x, approximate="tanh")
def _silu(x):
    return torch.nn.functional.silu(x)
def _sigmoid(x):
    return torch.sigmoid(x)
def _layernorm(x, axis=-1, eps=1e-5):
    m = x.mean(dim=axis, keepdim=True)
    v = x.var(dim=axis, keepdim=True, unbiased=False)
    return (x - m) / torch.sqrt(v + eps)
def _scatter_add(tgt, idx, src, axis=0):
    return tgt.clone().index_add_(axis, idx, src)
def _segment_sum(src, seg, n):
    out = torch.zeros((n,) + src.shape[1:], dtype=src.dtype)
    return out.index_add_(0, seg, src)
def _pad(x, pw):
    flat = tuple(v for pair in reversed(pw) for v in pair)
    return torch.nn.functional.pad(x, flat)

kernel_name = 'sequential_preLN__sliding_block_cached__glu_gated_bilinear__decode'

def setup_inputs():

    _w = (lambda a: (lambda t: t.to(torch.bfloat16) if t.is_floating_point() else t)(torch.as_tensor(a)))
    def _A_setup():
        B, Sq, D = 2, 1, 448
        Hq, Hkv, Sk, Dh = 16, 8, 32768, 256
        assert Hq % Hkv == 0, (Hq, Hkv)
        return {
            "x": _w((lambda *s: torch.randn(*s, dtype=torch.bfloat16) * 0.05)(B, Sq, D)),
            "k_cache": _w((lambda *s: torch.randn(*s, dtype=torch.bfloat16) * 1.6)(B, Hkv, Sk, Dh)),
            "v_cache": _w((lambda *s: torch.randn(*s, dtype=torch.bfloat16) * 0.8)(B, Hkv, Sk, Dh)),
            "wq": _w((lambda *s: torch.randn(*s, dtype=torch.bfloat16) * 1.6)(D, Hq * Dh) * (D ** -0.5)),
            "wo": _w((lambda *s: torch.randn(*s, dtype=torch.bfloat16) * 0.8)(Hq * Dh, D) * ((Hq * Dh) ** -0.5)),
        }
    _A_in = _A_setup()

    def _B_setup():
        B, S, D, F = 2, 1, 448, 1792
        return {
            "x": _w((lambda *s: torch.randn(*s, dtype=torch.bfloat16) * 0.05)(B, S, D)),
            "w_gate": _w((lambda *s: torch.randn(*s, dtype=torch.bfloat16) * 0.4)(D, F) * (D ** -0.5)),
            "w_up": _w((lambda *s: torch.randn(*s, dtype=torch.bfloat16) * 0.4)(D, F) * (D ** -0.5)),
            "w_down": _w((lambda *s: torch.randn(*s, dtype=torch.bfloat16) * 0.4)(F, D) * (F ** -0.5)),
        }
    _B_in = _B_setup()

    return {
        "A_x": _A_in["x"],
        "A_k_cache": _A_in["k_cache"],
        "A_v_cache": _A_in["v_cache"],
        "A_wq": _A_in["wq"],
        "A_wo": _A_in["wo"],
        "B_x": _B_in["x"],
        "B_w_gate": _B_in["w_gate"],
        "B_w_up": _B_in["w_up"],
        "B_w_down": _B_in["w_down"],
    }

def reference(A_x, A_k_cache, A_v_cache, A_wq, A_wo, B_x, B_w_gate, B_w_up, B_w_down):
    def _A_ref(x, k_cache, v_cache, wq, wo):
        B, Sq, D = x.shape
        Hq, Dh = 16, 256
        Hkv, Sk = k_cache.shape[1], k_cache.shape[2]
        W = min(4096, max(256, Sk // 4))
        rep = Hq // Hkv
        q = (lambda x, *d: x.permute(*d))((x @ wq).reshape(B, Sq, Hq, Dh), 0, 2, 1, 3)
        k = (lambda x, n, axis: torch.repeat_interleave(x, n, dim=axis))(k_cache[:, :, Sk - W:, :], rep, axis=1)
        v = (lambda x, n, axis: torch.repeat_interleave(x, n, dim=axis))(v_cache[:, :, Sk - W:, :], rep, axis=1)
        scores = torch.einsum("bhqd,bhkd->bhqk", q, k) * (Dh ** -0.5)
        p = _softmax(scores, axis=-1)
        o = torch.einsum("bhqk,bhkd->bhqd", p, v)
        return (lambda x, *d: x.permute(*d))(o, 0, 2, 1, 3).reshape(B, Sq, Hq * Dh) @ wo

    def _B_ref(x, w_gate, w_up, w_down):
        g = torch.einsum("bsd,df->bsf", x, w_gate)
        u = torch.einsum("bsd,df->bsf", x, w_up)
        h = g * u
        return torch.einsum("bsf,fd->bsd", h, w_down)

    x = A_x
    h = x + _A_ref(_layernorm(x, axis=-1), A_k_cache, A_v_cache, A_wq, A_wo)
    h2 = h + _B_ref(_layernorm(h, axis=-1), B_w_gate, B_w_up, B_w_down)
    return h2
```

```python
import re, subprocess, tempfile, os
KNAME = "sequential_preLN__sliding_block_cached__glu_gated_bilinear__decode_kernel"
MC = "llvm-mc"

class Asm:
    def __init__(self):
        self.items = []
        self.nopad = 0
    def __call__(self, s):
        for l in s.split("\n"):
            l = l.split(";")[0].strip() if not l.strip().startswith(";") else l.strip()
            if not l: continue
            if l.startswith(";"): self.items.append(("cmt", l, self.nopad))
            elif l.endswith(":"): self.items.append(("lab", l, self.nopad))
            elif l.startswith("."): self.items.append(("dir", l, self.nopad))
            else: self.items.append(("ins", l, self.nopad))
    def text(self):
        return "\n".join(t if k in ("lab", "dir") else "    " + t for k, t, _ in self.items)

def sizes(items):
    ins = [t for k, t, _ in items if k == "ins"]
    src = []
    for t in ins:
        m = t.split()[0]
        if m.startswith("s_cbranch") or m == "s_branch": src.append(m + " 0")
        else: src.append(t)
    with tempfile.NamedTemporaryFile("w", suffix=".s", delete=False) as f:
        f.write("\n".join(src) + "\n"); fn = f.name
    r = subprocess.run([MC, "-triple=amdgcn-amd-amdhsa", "-mcpu=gfx950", "-show-encoding", fn], capture_output=True, text=True)
    os.unlink(fn)
    if r.returncode != 0: raise RuntimeError(r.stderr[:3000])
    enc = re.findall(r"encoding: \[([^\]]*)\]", r.stdout)
    assert len(enc) == len(ins), (len(enc), len(ins))
    return [len(e.split(",")) for e in enc]

def insert_pads(a, target_of):
    sz = sizes(a.items)
    out = []; addr = 0; nxt = 1; it = iter(sz); pads = []
    for k, t, np_ in a.items:
        if k == "dir" and t.startswith(".p2align"):
            al = 1 << int(t.split()[1].rstrip(","))
            addr = (addr + al - 1) // al * al
            out.append((k, t, np_)); continue
        if k == "ins":
            if addr >= nxt * 1024 and not np_:
                assert addr + 4 <= nxt * 1024 + 64, f"pad {nxt} cannot be placed in first line (addr {addr})"
                out.append(("lab", f"Lpad{nxt}:", 0)); out.append(("ins", f"s_cbranch_execz @PAD{nxt}@", 0))
                pads.append(nxt); addr += 4; nxt += 1
            out.append((k, t, np_)); addr += next(it)
        else:
            out.append((k, t, np_))
    nb = nxt
    a.items = [(k, re.sub(r"@PAD(\d+)@", lambda m: target_of(int(m.group(1)), nb), t), n) for k, t, n in out]
    return nb, addr

def regs(op):
    op = op.strip()
    op = re.sub(r"^-|^abs\(|\)$|^\|", "", op).rstrip("|")
    m = re.fullmatch(r"([vsa])\[(\d+):(\d+)\]", op)
    if m: return {(m.group(1), i) for i in range(int(m.group(2)), int(m.group(3)) + 1)}
    m = re.fullmatch(r"([vsa])(\d+)", op)
    if m: return {(m.group(1), int(m.group(2)))}
    if op in ("vcc", "vcc_lo", "vcc_hi"): return {("s", "vcc")}
    if op in ("exec", "exec_lo", "exec_hi"): return {("s", "exec")}
    if op == "m0": return {("s", "m0")}
    return set()

TRANS = ("v_exp_", "v_log_", "v_rcp_", "v_rsq_", "v_sqrt_", "v_sin_", "v_cos_")
def parse(t):
    m = t.split(None, 1); mn = m[0]
    rest = m[1] if len(m) > 1 else ""
    ops = [o.strip() for o in re.split(r",(?![^\[]*\])", rest)]
    if ops:
        last = ops[-1].split()
        ops = ops[:-1] + ([last[0]] if last else [])
        mods = " ".join(last[1:])
    else: mods = ""
    d = dict(mn=mn, defs=set(), uses=set(), cls="other", srcc=set(), ab=set(), dpp=False, sdata=set(), states=1)
    R = [regs(o) for o in ops]
    U = lambda l: set().union(*l) if l else set()
    if mn.startswith("v_mfma"):
        d.update(cls="mfma", defs=R[0], ab=R[1] | R[2], srcc=R[3], uses=R[1] | R[2] | R[3])
    elif mn == "v_nop": pass
    elif mn.startswith("v_"):
        d["cls"] = "valu"
        if "swap" in mn: d.update(defs=R[0] | R[1], uses=R[0] | R[1]); d["perm"] = True
        elif mn.startswith("v_cmpx"): d.update(defs=R[0] | {("s", "exec")}, uses=U(R[1:]))
        elif mn.startswith(("v_add_co", "v_sub_co", "v_addc_co", "v_subb_co")): d.update(defs=R[0] | R[1], uses=U(R[2:]))
        else:
            d.update(defs=R[0], uses=U(R[1:]))
            if mn.startswith(("v_fmac", "v_dot2c", "v_pk_fmac")): d["uses"] |= R[0]
        if "_dpp" in mn or "quad_perm" in mods or "row_" in mods:
            d["dpp"] = True; d["uses"] |= R[0]
        if mn.startswith(TRANS): d["trans"] = True
        if mn.startswith(("v_readlane", "v_readfirstlane")): d["rl"] = True
    elif mn.startswith("ds_"):
        d["cls"] = "mem"
        if mn.startswith(("ds_read", "ds_bpermute", "ds_permute", "ds_swizzle")) or "rtn" in mn: d.update(defs=R[0], uses=U(R[1:]))
        else: d.update(uses=U(R))
    elif mn in ("buffer_wbl2", "buffer_inv"): pass
    elif mn.startswith(("global_", "buffer_")):
        d["cls"] = "mem"; d["vmem"] = True
        if "lds" in mn or " lds" in " " + mods: d.update(uses=U(R) | {("s", "m0")}); d["dma"] = True
        elif "load" in mn: d.update(defs=R[0], uses=U(R[1:]))
        else:
            d.update(uses=U(R))
            if "x4" in mn or "x3" in mn: d["sdata"] = R[1] if mn.startswith("global_") else R[0]
    elif mn == "s_nop":
        d["states"] = int(ops[0], 0) + 1
    elif mn.startswith("s_") and ops and not mn.startswith(("s_cmp", "s_cbranch", "s_branch", "s_waitcnt", "s_setprio", "s_sleep", "s_barrier", "s_bitcmp")):
        d["cls"] = "salu"; d.update(defs=R[0], uses=U(R[1:]))
        if "saveexec" in mn: d["defs"] |= {("s", "exec")}
    return d

def check_hazards(items):
    ins = [(t, parse(t)) for k, t, _ in items if k == "ins"]
    errs = []
    V = lambda s: {x for x in s if x[0] in "va"}
    S = lambda s: {x for x in s if x[0] == "s"}
    for i, (t, c) in enumerate(ins):
        dist = 0
        for j in range(i - 1, max(-1, i - 24), -1):
            pt, p = ins[j]
            need = 0
            if p["mn"] in ("s_branch", "s_endpgm"): break
            if p["cls"] == "valu":
                if c["cls"] == "mfma" and V(p["defs"]) & c["uses"]: need = max(need, 2)
                if c["cls"] == "mfma" and ("s", "exec") in p["defs"]: need = max(need, 4)
                if c.get("dpp") and V(p["defs"]) & c["uses"]: need = max(need, 2)
                if c.get("dpp") and ("s", "exec") in p["defs"]: need = max(need, 5)
                if c.get("perm") and V(p["defs"]) & c["uses"]: need = max(need, 2)
                if c.get("rl") and V(p["defs"]) & c["uses"]: need = max(need, 1)
                if p.get("trans") and c["cls"] == "valu" and not c.get("trans") and V(p["defs"]) & c["uses"]: need = max(need, 1)
                if p.get("trans") and c["cls"] == "mem" and V(p["defs"]) & c["uses"]: need = max(need, 1)
                if c["cls"] == "valu" and S(p["defs"]) & c["uses"]: need = max(need, 2)
                if c.get("vmem") and S(p["defs"]) & c["uses"]: need = max(need, 5)
            if p["cls"] == "mfma":
                if c["cls"] == "mfma":
                    if p["defs"] & c["ab"]: need = max(need, 8)
                    if p["defs"] & c["srcc"] and (p["defs"] != c["srcc"]): need = max(need, 6)
                    if p["defs"] & c["defs"] and not (p["defs"] & c["srcc"]): need = max(need, 6)
                elif c["cls"] in ("valu", "mem"):
                    if p["defs"] & (c["uses"] | c["defs"]): need = max(need, 8)
                    if c["cls"] == "valu" and p["srcc"] & c["defs"]: need = max(need, 3)
            if p["cls"] == "salu" and c.get("dma") and ("s", "m0") in p["defs"]: need = max(need, 1)
            if p["sdata"] and p["sdata"] & c["defs"]: need = max(need, 2)
            if need > dist: errs.append(f"hazard: '{pt}' -> '{t}' needs {need}, has {dist}")
            dist += p["states"]
            if dist > 20: break
    return errs
```

```python
import sys, struct
from alib import *

def f2u(x): return struct.unpack("<I", struct.pack("<f", x))[0]
LOG2E = 1.4426950408889634
ONES = "0x3f803f80"

EPOCH, READY, QBUF = 0, 0x400, 0xA0000
CLR = 0x20000
OBUF = CLR
LSE, HBUF, PBUF = CLR + 0x40000, CLR + 0x40800, CLR + 0x44000
TSBUF = 0x100000
L_XN, L_STAT, L_FLAG, L_RED, L_CS, L_Q = 0, 0x700, 0x780, 0x800, 0x1000, 0x1400
L_P, L_ORED, L_XD, L_W = 0x2000, 0x6000, 0x8000, 0xC000
L_G, L_U = L_W, L_W + 14336
LDS_BYTES = 0x14800
TMO = 1 << 17

def gen(ts=False, wfl="nt", kvfl="nt", hop=True, opiece=32, fast=True, kgap=2, vgap=2,
        two="Q", tgu="M", wodma="M", tfl="nt", prepoll=False, place="LLLLLLLLM", slp1=0, slp2=0, slp3=0, slpthr=16, diag=None, touch=True, skip=""):
    a = Asm()
    def TS(i):
        if ts: a(f"s_memrealtime s[{60+2*i}:{61+2*i}]")
    def END():
        a("s_branch L_tsout" if ts else "s_endpgm")
    def v4(r): return f"v[{r}:{r+3}]"
    def v2(r): return f"v[{r}:{r+1}]"
    def mfma(d, A, B, first): a(f"v_mfma_f32_16x16x32_bf16 {v4(d)}, {v4(A)}, {v4(B)}, {'0' if first else v4(d)}")
    def xrow(op, v, t, sixteen=True, thirty2=True):
        for name, on in (("16", sixteen), ("32", thirty2)):
            if on:
                a(f"v_mov_b32 v{t}, v{v}\ns_nop 1\nv_permlane{name}_swap_b32 v{v}, v{t}\n{op} v{v}, v{v}, v{t}")
    def inrow_add(v):
        for n in (8, 4, 2, 1):
            a(f"s_nop 1\nv_add_f32_dpp v{v}, v{v}, v{v} row_ror:{n} row_mask:0xf bank_mask:0xf")
    def rbf(v):
        a(f"v_cvt_pk_bf16_f32 v{v}, v{v}, v{v}\nv_and_b32 v{v}, 0xffff0000, v{v}")
    def ln_stats(raw, f, m, d, t):
        for i in range(8):
            a(f"v_lshlrev_b32 v{f+2*i}, 16, v{raw+i}\nv_and_b32 v{f+2*i+1}, 0xffff0000, v{raw+i}")
        a(f"v_add_f32 v{m}, v{f}, v{f+1}")
        for i in range(2, 16): a(f"v_add_f32 v{m}, v{m}, v{f+i}")
        inrow_add(m); xrow("v_add_f32", m, t, True, False)
        a(f"v_mul_f32 v{m}, {hex(f2u(1/448))}, v{m}")
        a(f"v_sub_f32 v{t}, v{f}, v{m}\nv_mul_f32 v{d}, v{t}, v{t}")
        for i in range(1, 16): a(f"v_sub_f32 v{t}, v{f+i}, v{m}\nv_fmac_f32 v{d}, v{t}, v{t}")
        a(f"v_cndmask_b32 v{d}, 0, v{d}, s[36:37]")
        inrow_add(d); xrow("v_add_f32", d, t, True, False)
        a(f"v_mul_f32 v{d}, {hex(f2u(1/448))}, v{d}")
        rbf(d)
        a(f"v_add_f32 v{d}, {hex(f2u(1e-5))}, v{d}")
        rbf(d)
        a(f"v_sqrt_f32 v{d}, v{d}")
        rbf(m)
        rbf(d)
    def diag_masks(base, t0=4, t1=6):
        a(f"""v_and_b32 v{t0}, 1, v2
        v_lshlrev_b32 v{t0}, 4, v{t0}
        v_mov_b32 v{t1}, 0xffff
        v_lshlrev_b32 v{t1}, v{t0}, v{t1}
        v_bfe_u32 v{t0}, v2, 1, 2""")
        for r in range(4):
            a(f"v_cmp_eq_u32 vcc, {r}, v{t0}\ns_nop 1\nv_cndmask_b32 v{base+r}, 0, v{t1}, vcc")
    def poll(name, loads, regs_, t, mask=None, first_issued=False, slp=0):
        a(f"s_mov_b32 s40, {TMO}")
        if mask: a(f"s_mov_b32 exec_lo, {mask[0]}\ns_mov_b32 exec_hi, {mask[1]}")
        if first_issued: a(f"s_branch {name}_chk")
        elif slp: a(f"s_branch {name}_ld")
        a(f"{name}:")
        if slp:
            a(f"s_bcnt1_i32_b64 s47, exec\ns_cmp_le_u32 s47, {slpthr}\ns_cbranch_scc1 {name}_ld\ns_sleep {slp}\n{name}_ld:")
        for l in loads: a(l)
        a(f"s_sub_u32 s40, s40, 1\ns_cbranch_scc1 {name}_done")
        a(f"{name}_chk:\ns_waitcnt vmcnt(0)")
        r = list(regs_)
        a(f"v_max3_u32 v{t}, v{r[0]}, v{r[1]}, v{r[2]}"); r = r[3:]
        while len(r) >= 2:
            a(f"v_max3_u32 v{t}, v{t}, v{r[0]}, v{r[1]}"); r = r[2:]
        if r: a(f"v_max_u32 v{t}, v{t}, v{r[0]}")
        a(f"v_cmp_eq_u32 vcc, -1, v{t}")
        a(f"s_and_b64 exec, exec, vcc")
        a.nopad += 1
        a(f"s_cbranch_scc1 {name}\n{name}_done:\ns_mov_b64 exec, -1")
        a.nopad -= 1
    def kvload(n, base, gap):
        i, hf = n // 2, n % 2
        a(f"global_load_dwordx4 {v4(128+4*n)}, v{8+i//4}, {base} offset:{(i%4)*2048+hf*256-4096} {kvfl}")
        if gap and n % gap == gap - 1 and n < 31: a("s_nop 0")
    def ffn_w(ph):
        for m, (lb, sb) in enumerate(((L_G, "s[16:17]"), (L_U, "s[18:19]"))):
            for i in range(4):
                if place[4*m+i] == ph:
                    a(f"s_add_u32 m0, s39, {lb+1024*i}")
                    a("s_mov_b32 exec_hi, 0" if i == 3 else "s_nop 0")
                    a(f"global_load_lds_dwordx4 v{44+i}, {sb} {wfl}")
                    if i == 3: a("s_mov_b32 exec_hi, -1")
        if place[8] == ph:
            a("s_mov_b32 exec_lo, s46\ns_mov_b32 exec_hi, s46")
            for i in range(4): a(f"global_load_dwordx4 {v4(48+4*i)}, v43, s[20:21] offset:{896*i} {wfl}")
            a("s_mov_b64 exec, -1")

    def wphase(ph):
        if two == ph: a(f"global_load_dword v1, v9, s[12:13] {tfl}")
        if tgu == ph: a(f"global_load_dword v1, v10, s[54:55] {tfl}")
        if wodma == ph:
            a(f"s_cmp_ge_u32 s30, 14\ns_cbranch_scc1 L_nowo{ph}\ns_lshl_b32 s38, s28, 13\ns_add_u32 m0, s38, {L_W}\ns_nop 0")
            for i in range(8):
                a(f"global_load_lds_dwordx4 v8, s[12:13] {wfl}")
                if i < 7: a(f"s_add_u32 m0, m0, 0x400\nv_add_u32 v8, {16*896}, v8")
            a(f"L_nowo{ph}:")
        if ph in place and ph != "L":
            a(f"s_sub_u32 s38, s30, 16\ns_cmp_ge_u32 s38, 14\ns_cbranch_scc1 L_noffn{ph}\ns_mul_i32 s39, s28, 3584")
            ffn_w(ph)
            a(f"L_noffn{ph}:")

    TS(0)
    a(f"""
    s_cmp_ge_u32 s2, 256
    s_cbranch_scc1 L_exit
    s_load_dwordx16 s[4:19], s[0:1], 0
    s_load_dwordx8 s[20:27], s[0:1], 64
    v_lshrrev_b32 v1, 6, v0
    v_and_b32 v0, 63, v0
    v_readfirstlane_b32 s28, v1
    s_and_b32 s29, s2, 7
    s_lshr_b32 s30, s2, 3
    s_lshr_b32 s31, s2, 7
    s_and_b32 s32, s30, 15
    v_and_b32 v2, 15, v0
    v_lshrrev_b32 v3, 4, v0
    v_and_b32 v5, 3, v0
    s_lshl_b32 s34, s31, 3
    s_add_u32 s34, s34, s29
    s_lshl_b32 s34, s34, 9
    s_and_b32 s35, s28, 3
    s_lshl_b32 s38, s35, 4
    s_add_u32 s38, s38, s32
    s_add_u32 s34, s34, s38
    s_lshl_b32 s34, s34, 15
    s_add_u32 s34, s34, {28672*512 + 4096}
    s_lshl_b32 s50, s35, 13
    s_xor_b32 s51, s50, 0x2000
    s_xor_b32 s52, s50, 0x4000
    s_xor_b32 s53, s50, 0x6000
    s_cmp_ge_u32 s28, 4
    s_cbranch_scc1 L_vwave
    v_lshrrev_b32 v4, 2, v2
    v_lshlrev_b32 v4, 9, v4
    v_lshl_add_u32 v4, v3, 6, v4
    v_lshl_add_u32 v4, v5, 4, v4
    v_add_u32 v4, s34, v4
    v_add_u32 v8, s50, v4
    v_add_u32 v9, s51, v4
    v_add_u32 v10, s52, v4
    v_add_u32 v11, s53, v4
    s_waitcnt lgkmcnt(0)
    s_load_dword s33, s[26:27], {EPOCH}
    """)
    TS(1)
    for n in range(32):
        kvload(n, "s[6:7]", kgap)
    a("s_branch L_kwave")
    a(f"""
    L_vwave:
    s_cmp_eq_u32 s28, 4
    s_cbranch_scc1 L_qwave
    """)
    if hop:
        a.nopad += 1
        a(f"""
        s_mov_b64 exec, 0
        s_cmp_eq_u32 s28, 6
        s_cbranch_scc1 Lpad2
        s_cmp_eq_u32 s28, 7
        s_cbranch_scc1 Lpad3
        s_branch Lpad1
        L_back:
        s_mov_b64 exec, -1
        """)
        a.nopad -= 1
    a(f"""
    s_waitcnt lgkmcnt(0)
    s_branch L_vload
    L_qwave:
    s_setprio 3
    v_and_b32 v4, 31, v0
    v_cmp_gt_u32 s[36:37], 28, v4
    v_lshrrev_b32 v7, 5, v0
    v_mul_u32_u24 v7, 896, v7
    v_lshl_add_u32 v12, v4, 5, v7
    s_and_b32 s41, s29, 1
    s_lshl_b32 s41, s41, 2
    s_lshr_b32 s38, s30, 3
    s_add_u32 s41, s41, s38
    s_lshr_b32 s42, s29, 1
    s_lshl_b32 s42, s42, 3
    s_and_b32 s38, s30, 7
    s_add_u32 s42, s42, s38
    s_mul_i32 s38, s41, {56*8192}
    s_lshl_b32 s39, s42, 8
    s_add_u32 s38, s38, s39
    v_mul_u32_u24 v6, {14*8192}, v3
    v_lshl_add_u32 v6, v2, 4, v6
    v_add_u32 v112, s38, v6
    s_movk_i32 s38, 0x2000
    """)
    for i in range(1, 14): a(f"v_add_u32 v{112+i}, s38, v{111+i}")
    for i in range(8): a(f"v_mov_b32 v{16+i}, 0")
    for i in range(4): a(f"v_mov_b32 v{24+i}, -1")
    a(f"""
    ds_write_b32 v16, v16 offset:{L_FLAG}
    s_lshl_b32 s38, s2, 11
    s_add_u32 s38, s38, {CLR}
    v_lshl_add_u32 v13, v0, 4, s38
    v_min_u32 v14, {896+27*32}, v12
    s_waitcnt lgkmcnt(0)
    s_load_dword s33, s[26:27], {EPOCH}
    global_load_dwordx4 v[16:19], v14, s[4:5]
    global_load_dwordx4 v[20:23], v14, s[4:5] offset:16
    """)
    for i in range(14): a(f"global_load_dwordx4 {v4(128+4*i)}, v{112+i}, s[10:11] {wfl}")
    a(f"""
    global_store_dwordx4 v13, v[24:27], s[26:27] sc1
    global_store_dwordx4 v13, v[24:27], s[26:27] offset:1024 sc1
    s_branch L_qcomp
    L_exit:
    s_endpgm
    .p2align 10
    """)
    a("L_qcomp:")
    TS(1)
    diag_masks(8)
    a("s_waitcnt vmcnt(16)")
    for i in range(8): a(f"v_cndmask_b32 v{16+i}, 0, v{16+i}, s[36:37]")
    ln_stats(16, 32, 48, 49, 50)
    a("v_rcp_f32 v49, v49")
    for i in range(16): a(f"v_sub_f32 v{32+i}, v{32+i}, v48")
    for i in range(8):
        a(f"v_cvt_pk_bf16_f32 v{16+i}, v{32+2*i}, v{33+2*i}")
    for i in range(8):
        a(f"v_lshlrev_b32 v{32+2*i}, 16, v{16+i}\nv_and_b32 v{33+2*i}, 0xffff0000, v{16+i}")
    for i in range(16): a(f"v_mul_f32 v{32+i}, v{32+i}, v49")
    for i in range(16): a(f"v_cvt_pk_bf16_f32 v{32+i}, v{32+i}, v{32+i}")
    a(f"""
    v_lshlrev_b32 v12, 1, v12
    s_mov_b64 exec, s[36:37]
    """)
    for i in range(4): a(f"ds_write_b128 v12, {v4(32+4*i)} offset:{L_XD+16*i}")
    a(f"""
    s_mov_b64 exec, -1
    v_lshrrev_b32 v4, 3, v2
    v_mul_u32_u24 v4, 1792, v4
    v_mul_u32_u24 v7, 56, v3
    s_mul_i32 s38, s41, 224
    v_add3_u32 v7, v7, v4, s38
    s_waitcnt lgkmcnt(0)
    """)
    for i in range(7): a(f"ds_read_b64 {v2(16+2*i)}, v7 offset:{L_XD+8*i}")
    a(f"""
    s_add_u32 s33, s33, 0x9e3779b0
    s_andn2_b32 s33, s33, 15
    s_getreg_b32 s39, hwreg(HW_REG_XCC_ID, 0, 4)
    s_or_b32 s39, s39, s33
    s_lshr_b32 s38, s42, 2
    s_lshl_b32 s38, s38, 15
    s_lshl_b32 s41, s41, 11
    s_add_u32 s38, s38, s41
    s_and_b32 s41, s42, 3
    s_lshl_b32 s41, s41, 9
    s_add_u32 s38, s38, s41
    s_add_u32 s38, s38, {QBUF}
    v_lshrrev_b32 v4, 5, v0
    v_lshlrev_b32 v4, 14, v4
    v_and_b32 v6, 31, v0
    v_lshl_add_u32 v4, v6, 4, v4
    v_add_u32 v4, s38, v4
    s_lshl_b32 s41, s29, 5
    s_add_u32 s41, s41, s30
    s_lshl_b32 s41, s41, 2
    v_mov_b32 v7, s41
    v_mov_b32 v36, s39
    s_lshr_b32 s41, s33, 4
    v_mov_b32 v37, s41
    v_lshrrev_b32 v38, 8, v37
    v_lshrrev_b32 v39, 16, v37
    v_lshrrev_b32 v40, 24, v37
    s_movk_i32 s41, 0xff
    s_waitcnt lgkmcnt(0)
    """)
    for i in range(14):
        for r in range(4): a(f"v_and_b32 v{192+4*i+r}, v{16+i}, v{8+r}")
    a("s_waitcnt vmcnt(0)")
    TS(2)
    for i in range(14): mfma(32, 192+4*i, 128+4*i, i == 0)
    a("s_nop 7")
    for r in range(4): a(f"v_bfi_b32 v{32+r}, s41, v{37+r}, v{32+r}")
    a(f"""
    global_store_dwordx4 v4, v[32:35], s[26:27] sc1
    global_store_dword v7, v36, s[26:27] offset:{READY} sc1
    s_setprio 0
    """)
    TS(3)
    a(f"""
    L_vload:
    v_lshlrev_b32 v4, 9, v3
    v_lshl_add_u32 v4, v2, 4, v4
    v_add_u32 v4, s34, v4
    v_add_u32 v8, s50, v4
    v_add_u32 v9, s51, v4
    v_add_u32 v10, s52, v4
    v_add_u32 v11, s53, v4
    """)
    diag_masks(12)
    a(f"""
    s_lshl_b32 s38, s35, 12
    v_lshl_add_u32 v4, v0, 4, s38
    s_lshl_b32 s38, s35, 11
    v_lshrrev_b32 v7, 1, v3
    v_lshlrev_b32 v7, 10, v7
    v_lshl_add_u32 v7, v2, 5, v7
    v_and_b32 v6, 1, v3
    v_lshl_add_u32 v7, v6, 4, v7
    v_add_u32 v7, s38, v7
    s_barrier ; B1
    """)
    for n in range(32): kvload(n, "s[8:9]", vgap)
    TS(4)
    a("s_barrier ; B2")
    TS(5)
    for i in range(4): a(f"ds_read_b128 {v4(16+4*i)}, v4 offset:{L_P+1024*i}")
    a("s_waitcnt lgkmcnt(0)")
    for i in range(16):
        for r in range(4): a(f"v_and_b32 v{64+4*i+r}, v{16+i}, v{12+r}")
    for i in range(16):
        for hf in range(2):
            a(f"s_waitcnt vmcnt({31-2*i-hf})")
            mfma(32+4*hf, 64+4*i, 128+8*i+4*hf, i == 0)
    TS(6)
    a(f"""
    s_nop 6
    ds_write_b128 v7, v[32:35] offset:{L_ORED}
    ds_write_b128 v7, v[36:39] offset:{L_ORED+512}
    s_waitcnt lgkmcnt(0)
    s_barrier ; B3
    s_cmp_lt_u32 s30, 14
    s_cbranch_scc1 L_wo
    L_end:
    """)
    END()
    P = opiece; lp = P.bit_length() - 1
    a(f"""
    L_kwave:
    s_mul_i32 s38, s29, 14
    s_add_u32 s45, s38, s32
    s_lshl_b32 s38, s45, 5
    s_mul_i32 s39, s28, {112*3584}
    s_add_u32 s38, s38, s39
    v_lshrrev_b32 v44, 1, v0
    v_mul_u32_u24 v44, 3584, v44
    v_and_b32 v7, 1, v0
    v_lshl_add_u32 v44, v7, 4, v44
    v_add_u32 v44, s38, v44
    v_add_u32 v45, {32*3584}, v44
    v_add_u32 v46, {64*3584}, v44
    v_add_u32 v47, {96*3584}, v44
    s_mul_i32 s38, s45, {16*896}
    s_lshl_b32 s39, s28, 8
    s_add_u32 s38, s38, s39
    v_mul_u32_u24 v43, {4*896}, v3
    v_lshl_add_u32 v43, v2, 4, v43
    v_add_u32 v43, s38, v43
    s_cmp_eq_u32 s28, 3
    s_cselect_b32 s46, 0x00ff00ff, -1
    s_mul_i32 s39, s28, 3584
    s_lshl_b32 s38, s29, 2
    s_add_u32 s38, s38, s28
    s_mul_i32 s38, s38, {128*896}
    s_lshl_b32 s41, s32, 6
    s_add_u32 s38, s38, s41
    v_lshrrev_b32 v8, 2, v0
    v_mul_u32_u24 v8, 896, v8
    v_lshl_add_u32 v8, v5, 4, v8
    v_add_u32 v8, s38, v8
    v_and_b32 v12, 1, v3
    v_mul_u32_u24 v12, 896, v12
    v_lshl_add_u32 v12, v2, 2, v12
    v_add_u32 v12, s41, v12
    s_lshl_b32 s38, s29, 5
    s_add_u32 s38, s38, s30
    s_lshl_b32 s38, s38, 2
    s_add_u32 s38, s38, s28
    s_mul_i32 s38, s38, 3584
    v_min_u32 v9, 27, v0
    v_lshrrev_b32 v10, 2, v9
    v_lshl_add_u32 v9, v9, 7, s38
    s_lshl_b32 s38, s30, 1
    s_and_b32 s41, s28, 1
    s_add_u32 s38, s38, s41
    s_mul_i32 s38, s38, {7*3584}
    s_mul_i32 s41, s29, 448
    s_andn2_b32 s41, s41, 127
    s_add_u32 s38, s38, s41
    v_mul_u32_u24 v10, 3584, v10
    v_lshl_add_u32 v10, v5, 7, v10
    v_add_u32 v10, s38, v10
    s_cmp_ge_u32 s28, 2
    s_cselect_b32 s54, s18, s16
    s_cselect_b32 s55, s19, s17
    s_cmp_ge_u32 s30, 14
    s_cbranch_scc1 L_knox
    global_load_dword v11, v12, s[4:5]
    L_knox:
    """)
    if touch: a("""s_cmp_lt_u32 s32, 14
    s_cbranch_scc1 L_knot
    v_mov_b32 v7, 0
    global_load_dword v11, v7, s[22:23]
    L_knot:""")
    wphase("E")
    TS(2)
    a(f"""
    s_barrier ; B1
    s_lshl_b32 s42, s29, 1
    s_add_u32 s42, s42, s31
    v_lshrrev_b32 v4, 3, v2
    v_lshlrev_b32 v6, 9, v4
    v_lshl_add_u32 v6, v3, 6, v6
    v_lshl_add_u32 v6, v5, 4, v6
    v_mov_b32 v14, 0
    s_lshl_b32 s38, s42, 14
    s_lshl_b32 s41, s28, 9
    s_add_u32 s38, s38, s41
    s_add_u32 s38, s38, {QBUF+4096}
    v_lshrrev_b32 v7, 5, v0
    v_lshlrev_b32 v12, 13, v7
    v_and_b32 v13, 31, v0
    v_lshl_add_u32 v12, v13, 4, v12
    v_add_u32 v12, s38, v12
    v_lshlrev_b32 v15, 4, v0
    s_waitcnt lgkmcnt(0)
    s_add_u32 s33, s33, 0x9e3779b0
    s_andn2_b32 s33, s33, 15
    s_lshr_b32 s56, s33, 4
    s_lshr_b32 s57, s33, 12
    s_lshr_b32 s58, s33, 20
    s_lshr_b32 s59, s33, 28
    s_getreg_b32 s39, hwreg(HW_REG_XCC_ID, 0, 4)
    s_or_b32 s39, s39, s33
    v_mov_b32 v32, s39
    v_mov_b32 v33, s39
    v_mov_b32 v34, s39
    v_mov_b32 v35, s39
    s_mov_b32 s40, {TMO}
    L_pq:
    """)
    for i in range(4): a(f"global_load_dwordx4 {v4(16+4*i)}, v12, s[26:27] offset:{2048*i-4096} sc1")
    a(f"""
    s_cmp_lg_u32 s28, 0
    s_cbranch_scc1 L_pq_nordy
    global_load_dwordx4 v[32:35], v15, s[26:27] offset:{READY} sc1
    L_pq_nordy:
    s_sub_u32 s40, s40, 1
    s_cbranch_scc1 L_pq_done
    s_waitcnt vmcnt(0)
    v_max3_u32 v36, v32, v33, v34
    v_min3_u32 v37, v32, v33, v34
    v_max3_u32 v36, v36, v35, s39
    v_min3_u32 v37, v37, v35, s39
    v_xor_b32 v38, s56, v16
    """)
    for i in range(1, 16): a(f"v_bitop3_b32 v38, v{16+i}, s{56+i%4}, v38 bitop3:0xbe")
    a(f"""
    v_xor_b32 v39, v36, v37
    v_lshrrev_b32 v39, 4, v39
    v_and_b32 v38, 0xff, v38
    v_or_b32 v38, v38, v39
    v_cmp_ne_u32 vcc, 0, v38
    s_and_b64 exec, exec, vcc
    """)
    a.nopad += 1
    a("s_cbranch_scc1 L_pq\nL_pq_done:\ns_mov_b64 exec, -1")
    a.nopad -= 1
    a("s_waitcnt vmcnt(0)\nv_cmp_ne_u32 vcc, v36, v37")
    for i in range(16): a(f"v_and_b32 v{16+i}, 0xffffff00, v{16+i}")
    for i in range(4): a(f"v_pk_add_f32 {v2(16+2*i)}, {v2(16+2*i)}, {v2(24+2*i)}")
    a(f"""
    v_pk_add_f32 v[16:17], v[16:17], v[20:21]
    v_pk_add_f32 v[18:19], v[18:19], v[22:23]
    s_lshl_b32 s38, s29, 3
    s_lshr_b64 s[48:49], vcc, s38
    s_and_b32 s48, s48, 0xff
    s_cselect_b32 s48, 0x101, {1 if fast else 0x101}
    v_permlane32_swap_b32 v16, v18
    v_permlane32_swap_b32 v17, v19
    v_pk_add_f32 v[16:17], v[16:17], v[18:19]
    v_cvt_pk_bf16_f32 v16, v16, v17
    v_lshlrev_b32 v7, 2, v7
    v_lshl_add_u32 v7, v2, 4, v7
    v_and_b32 v13, 1, v3
    v_lshl_add_u32 v7, v13, 3, v7
    s_lshl_b32 s38, s28, 8
    v_add_u32 v7, s38, v7
    v_mov_b32 v13, s48
    ds_write_b32 v7, v16 offset:{L_Q}
    s_mov_b64 exec, 1
    ds_add_u32 v14, v13 offset:{L_FLAG}
    s_mov_b64 exec, -1
    L_qwait:
    ds_read_b32 v13, v14 offset:{L_FLAG}
    s_sub_u32 s40, s40, 1
    s_cbranch_scc1 L_qgot
    s_waitcnt lgkmcnt(0)
    v_readfirstlane_b32 s48, v13
    s_and_b32 s38, s48, 0xff
    s_cmp_eq_u32 s38, 4
    s_cbranch_scc1 L_qgot
    s_sleep 1
    s_branch L_qwait
    L_qgot:
    ds_read_b128 v[32:35], v6 offset:{L_Q}
    ds_read_b128 v[36:39], v6 offset:{L_Q+256}
    s_mov_b32 s41, {hex(f2u(LOG2E / 16))}
    s_waitcnt lgkmcnt(0)
    """)
    TS(3)
    for i in range(16):
        mfma(64+4*i, 128+8*i, 32, True); mfma(64+4*i, 132+8*i, 36, False)
    for r in range(4):
        for i in range(16):
            if r == 0: a(f"v_mov_b32_dpp v{16+i}, v{64+4*i} quad_perm:[0,0,0,0] row_mask:0xf bank_mask:0xf")
            else: a(f"v_add_f32_dpp v{16+i}, v{64+4*i+r}, v{16+i} quad_perm:[{r},{r},{r},{r}] row_mask:0xf bank_mask:0xf")
    for i in range(8): a(f"v_cvt_pk_bf16_f32 v{32+i}, v{16+2*i}, v{17+2*i}")
    for i in range(8): a(f"v_lshlrev_b32 v{16+2*i}, 16, v{32+i}\nv_and_b32 v{17+2*i}, 0xffff0000, v{32+i}")
    a("v_max3_f32 v40, v16, v17, v18")
    for i in range(6): a(f"v_max3_f32 v40, v40, v{19+2*i}, v{20+2*i}")
    a("v_max_f32 v40, v40, v31")
    xrow("v_max_f32", 40, 42)
    for i in range(16): a(f"v_sub_f32 v{16+i}, v{16+i}, v40")
    for i in range(16): a(f"v_mul_f32 v{16+i}, s41, v{16+i}")
    for i in range(16): a(f"v_exp_f32 v{16+i}, v{16+i}")
    a("v_mul_f32 v40, s41, v40\nv_add_f32 v41, v16, v17")
    for i in range(2, 16): a(f"v_add_f32 v41, v41, v{16+i}")
    xrow("v_add_f32", 41, 42)
    for i in range(16): a(f"v_cvt_pk_bf16_f32 v{16+i}, v{16+i}, v{16+i}")
    a(f"""
    s_lshl_b32 s38, s28, 12
    v_lshl_add_u32 v7, v0, 4, s38
    s_lshl_b32 s38, s28, 3
    v_lshl_add_u32 v12, v4, 5, s38
    """)
    for i in range(4): a(f"ds_write_b128 v7, {v4(16+4*i)} offset:{L_P+1024*i}")
    a(f"""
    ds_write_b64 v12, v[40:41] offset:{L_STAT}
    s_lshr_b32 s38, s28, 1
    s_lshl_b32 s39, s38, 5
    v_mov_b32 v12, s39
    s_lshl_b32 s39, s28, 9
    v_lshl_add_u32 v13, v0, 3, s39
    ; byte index in o vector: B = 256w + 4l ; addr = (B/P)*16P + s*P + B%P
    s_lshl_b32 s39, s28, 8
    v_lshl_add_u32 v7, v0, 2, s39
    v_lshrrev_b32 v14, {lp}, v7
    v_lshlrev_b32 v14, {lp+4}, v14
    v_and_b32 v7, {P-1}, v7
    s_lshl_b32 s39, s42, 14
    s_lshl_b32 s43, s32, {lp}
    s_add_u32 s39, s39, s43
    s_add_u32 s39, s39, {OBUF}
    v_add3_u32 v14, v14, v7, s39
    s_lshl_b32 s39, s42, 7
    s_lshl_b32 s38, s38, 6
    s_add_u32 s39, s39, s38
    s_lshl_b32 s38, s32, 2
    s_add_u32 s39, s39, s38
    s_add_u32 s39, s39, {LSE}
    v_mov_b32 v15, s39
    """)
    wphase("Q")
    a("s_waitcnt lgkmcnt(0)")
    TS(4)
    a("s_barrier ; B2")
    TS(5)
    a(f"""
    ds_read_b128 v[16:19], v12 offset:{L_STAT}
    ds_read_b128 v[20:23], v12 offset:{L_STAT+16}
    s_waitcnt lgkmcnt(0)
    v_max3_f32 v24, v16, v18, v20
    v_max_f32 v24, v24, v22
    v_sub_f32 v16, v16, v24
    v_sub_f32 v18, v18, v24
    v_sub_f32 v20, v20, v24
    v_sub_f32 v22, v22, v24
    v_exp_f32 v16, v16
    v_exp_f32 v18, v18
    v_exp_f32 v20, v20
    v_exp_f32 v22, v22
    v_mul_f32 v25, v16, v17
    v_fmac_f32 v25, v18, v19
    v_fmac_f32 v25, v20, v21
    v_fmac_f32 v25, v22, v23
    v_rcp_f32 v26, v25
    v_log_f32 v25, v25
    v_mul_f32 v16, v16, v26
    v_mul_f32 v18, v18, v26
    v_mul_f32 v20, v20, v26
    v_mul_f32 v22, v22, v26
    v_add_f32 v25, v25, v24
    v_min_u32 v25, -2, v25
    s_bitcmp1_b32 s28, 0
    s_cbranch_scc1 L_nolse
    s_mov_b64 exec, 1
    global_store_dword v15, v25, s[26:27] sc1
    s_mov_b64 exec, -1
    L_nolse:
    """)
    wphase("M")
    a("s_cmp_eq_u32 s48, 4\ns_barrier ; B3")
    TS(6)
    for i in range(4): a(f"ds_read_b64 {v2(24+2*i)}, v13 offset:{L_ORED+2048*i}")
    a(f"""
    s_waitcnt lgkmcnt(0)
    v_pk_mul_f32 v[24:25], v[24:25], v[16:17] op_sel_hi:[1,0]
    v_pk_mul_f32 v[28:29], v[28:29], v[20:21] op_sel_hi:[1,0]
    v_pk_fma_f32 v[24:25], v[26:27], v[18:19], v[24:25] op_sel_hi:[1,0,1]
    v_pk_fma_f32 v[28:29], v[30:31], v[22:23], v[28:29] op_sel_hi:[1,0,1]
    v_pk_add_f32 v[24:25], v[24:25], v[28:29]
    v_cvt_pk_bf16_f32 v24, v24, v25
    v_min_u32 v24, -2, v24
    s_cbranch_scc0 L_oslow
    global_store_dword v14, v24, s[26:27]
    L_opub:
    """)
    wphase("L")
    a(f"""
    s_cmp_ge_u32 s30, 14
    s_cbranch_scc1 L_knotwo
    v_mov_b32 v60, v11
    """)
    a(f"""
    L_wo:
    s_lshr_b32 s41, s28, 2
    s_lshl_b32 s42, s29, 1
    s_add_u32 s42, s42, s41
    s_lshl_b32 s38, s42, 14
    s_add_u32 s38, s38, {OBUF}
    s_lshl_b32 s39, s35, 8
    v_lshl_add_u32 v7, v3, 4, s39
    v_lshrrev_b32 v9, {lp}, v7
    v_lshlrev_b32 v9, {lp+4}, v9
    v_and_b32 v7, {P-1}, v7
    v_add3_u32 v9, v9, v7, s38
    v_lshl_add_u32 v9, v2, {lp}, v9
    s_lshl_b32 s38, s42, 7
    s_lshr_b32 s39, s35, 1
    s_lshl_b32 s39, s39, 6
    s_add_u32 s38, s38, s39
    s_add_u32 s38, s38, {LSE}
    v_lshl_add_u32 v10, v3, 4, s38
    """)
    def ooff(t):
        B = 64 * t
        return (B // P) * 16 * P + B % P
    oloads = [f"global_load_dwordx4 {v4(32+4*t)}, v9, s[26:27] offset:{ooff(t)} sc1" for t in range(4)]
    a("global_load_dwordx4 v[16:19], v10, s[26:27] sc1")
    for l in oloads: a(l)
    a(f"""
    v_lshlrev_b32 v6, 9, v3
    v_lshrrev_b32 v7, 2, v2
    v_lshl_add_u32 v6, v7, 6, v6
    v_lshl_add_u32 v6, v5, 3, v6
    s_lshl_b32 s38, s35, 13
    s_add_u32 s38, s38, {L_W}
    v_add_u32 v6, s38, v6
    """)
    if wodma != "E": a("s_waitcnt vmcnt(5)\ns_barrier ; B3b")
    for t in range(4):
        for nt in range(2):
            for hh in range(2):
                a(f"ds_read_b64_tr_b16 {v2(64+8*t+4*nt+2*hh)}, v6 offset:{2048*t+256*hh+32*nt}")
    a(f"""
    v_lshrrev_b32 v11, 1, v3
    v_lshlrev_b32 v11, 9, v11
    v_lshrrev_b32 v7, 1, v2
    v_lshl_add_u32 v11, v7, 6, v11
    v_and_b32 v7, 1, v3
    v_lshl_add_u32 v11, v7, 3, v11
    v_and_b32 v7, 1, v2
    v_lshl_add_u32 v11, v7, 2, v11
    s_lshl_b32 s39, s35, 4
    s_lshl_b32 s38, s41, 10
    s_add_u32 s39, s39, s38
    v_add_u32 v11, s39, v11
    v_lshlrev_b32 v12, 6, v0
    s_lshl_b32 s38, s29, 7
    s_lshl_b32 s39, s32, 10
    s_add_u32 s38, s38, s39
    s_add_u32 s38, s38, {HBUF}
    v_lshl_add_u32 v13, v0, 2, s38
    s_cmp_eq_u32 s29, 0
    s_cselect_b32 s38, -1, 0
    v_and_b32 v60, s38, v60
    v_and_b32 v61, 0xffff0000, v60
    v_lshlrev_b32 v60, 16, v60
    """)
    poll("L_pl", ["global_load_dwordx4 v[16:19], v10, s[26:27] sc1"], range(16, 20), 4, first_issued=True, slp=slp1)
    a("v_max3_f32 v20, v16, v17, v18\nv_max_f32 v20, v20, v19")
    xrow("v_max_f32", 20, 21)
    for r in range(4): a(f"v_sub_f32 v{16+r}, v{16+r}, v20")
    for r in range(4): a(f"v_exp_f32 v{16+r}, v{16+r}")
    a("v_add_f32 v20, v16, v17\nv_add_f32 v21, v18, v19\nv_add_f32 v20, v20, v21")
    xrow("v_add_f32", 20, 21)
    a("v_rcp_f32 v20, v20\ns_waitcnt lgkmcnt(0)")
    for r in range(4): a(f"v_mul_f32 v{16+r}, v{16+r}, v20")
    poll("L_po", oloads, range(32, 48), 4, first_issued=True, slp=slp1)
    TS(7)
    for t in range(4):
        for nt in range(2): mfma(48+4*nt, 32+4*t, 64+8*t+4*nt, t == 0)
    a(f"""
    s_nop 6
    v_mul_f32 v24, v48, v16
    v_mul_f32 v25, v52, v16
    v_fmac_f32 v24, v49, v17
    v_fmac_f32 v25, v53, v17
    v_fmac_f32 v24, v50, v18
    v_fmac_f32 v25, v54, v18
    v_fmac_f32 v24, v51, v19
    v_fmac_f32 v25, v55, v19
    s_cmp_lg_u32 s28, 0
    s_nop 0
    v_permlane32_swap_b32 v24, v25
    v_add_f32 v24, v24, v25
    ds_write_b32 v11, v24 offset:{L_RED}
    s_mov_b32 exec_hi, 0
    s_waitcnt lgkmcnt(0)
    s_barrier ; B4
    s_cbranch_scc1 L_end2
    """)
    for i in range(4): a(f"ds_read_b128 {v4(16+4*i)}, v12 offset:{L_RED+16*i}")
    a(f"""
    s_waitcnt lgkmcnt(0)
    v_pk_add_f32 v[16:17], v[16:17], v[18:19]
    v_pk_add_f32 v[20:21], v[20:21], v[22:23]
    v_pk_add_f32 v[24:25], v[24:25], v[26:27]
    v_pk_add_f32 v[28:29], v[28:29], v[30:31]
    v_pk_add_f32 v[16:17], v[16:17], v[60:61]
    v_pk_add_f32 v[20:21], v[20:21], v[24:25]
    v_pk_add_f32 v[16:17], v[16:17], v[28:29]
    v_pk_add_f32 v[16:17], v[16:17], v[20:21]
    v_cvt_pk_bf16_f32 v16, v16, v17
    v_min_u32 v16, -2, v16
    global_store_dword v13, v16, s[26:27] sc1
    """)
    TS(8)
    a("L_end2:")
    END()
    a(f"""
    L_oslow:
    global_store_dword v14, v24, s[26:27] sc1
    s_branch L_opub
    L_knotwo:
    s_cmp_ge_u32 s32, 14
    s_cbranch_scc1 L_kfinal
    """)
    a("s_mul_i32 s39, s28, 3584")
    ffn_w("L")
    diag_masks(12)
    a(f"""
    v_and_b32 v7, 1, v3
    v_lshlrev_b32 v6, 8, v3
    v_lshl_add_u32 v6, v2, 3, v6
    s_add_u32 s38, s39, {L_G}
    v_add_u32 v6, s38, v6
    v_lshlrev_b32 v8, 8, v7
    v_lshl_add_u32 v8, v2, 3, v8
    v_add_u32 v8, s38, v8
    s_mul_i32 s38, s28, 112
    v_lshl_add_u32 v9, v3, 3, s38
    v_lshl_add_u32 v10, v7, 3, s38
    v_lshlrev_b32 v11, 6, v2
    v_add_u32 v11, {HBUF}, v11
    v_lshrrev_b32 v4, 5, v9
    v_and_b32 v9, 31, v9
    v_lshl_add_u32 v9, v9, 1, v11
    v_lshl_add_u32 v9, v4, 10, v9
    v_lshrrev_b32 v4, 5, v10
    v_and_b32 v10, 31, v10
    v_lshl_add_u32 v10, v10, 1, v11
    v_lshl_add_u32 v10, v4, 10, v10
    """)
    for r in range(8): a(f"v_mov_b32 v{96+r}, {ONES}")
    a(f"""
    s_lshl_b32 s38, s28, 3
    v_lshl_add_u32 v40, v2, 5, s38
    v_lshlrev_b32 v41, 5, v2
    s_lshl_b32 s38, s28, 8
    v_lshl_add_u32 v11, v0, 2, s38
    v_lshrrev_b32 v42, 3, v2
    v_lshlrev_b32 v42, 7, v42
    v_lshl_add_u32 v117, v3, 4, v42
    v_lshrrev_b32 v4, 1, v3
    v_mul_u32_u24 v4, 14, v4
    v_lshrrev_b32 v43, 2, v2
    v_add_u32 v4, v4, v43
    v_mul_u32_u24 v4, 7168, v4
    v_lshl_add_u32 v4, v7, 5, v4
    v_lshl_add_u32 v4, v5, 3, v4
    s_mul_i32 s38, s28, {4*7168}
    s_lshl_b32 s41, s45, 6
    s_add_u32 s38, s38, s41
    s_add_u32 s38, s38, {PBUF}
    v_add_u32 v116, s38, v4
    s_waitcnt vmcnt(0)
    """)
    TS(7)
    for m in range(2):
        for t in range(4):
            for hh in range(2):
                a(f"ds_read_b64_tr_b16 {v2(64+16*m+4*t+2*hh)}, v{6 if t<3 else 8} offset:{14336*m+1024*t+128*hh}")
    a("s_waitcnt lgkmcnt(0)\ns_mov_b32 exec_lo, 0")
    for r in range(4): a(f"v_mov_b32 v{76+r}, 0\nv_mov_b32 v{92+r}, 0\nv_mov_b32 v{100+r}, 0")
    a("s_mov_b32 exec_lo, -1\ns_nop 0")
    for t in range(4):
        for m in range(2): mfma(104+4*m, 96, 64+16*m+4*t, t == 0)
    a(f"""s_nop 6
    v_mul_f32 v104, {hex(f2u(-1/448))}, v104
    v_mul_f32 v105, {hex(f2u(-1/448))}, v108
    ds_write_b64 v40, v[104:105] offset:{L_CS}
    s_waitcnt lgkmcnt(0)
    s_barrier ; B4
    ds_read_b128 v[104:107], v41 offset:{L_CS}
    ds_read_b128 v[108:111], v41 offset:{L_CS+16}
    s_waitcnt lgkmcnt(0)
    v_pk_add_f32 v[104:105], v[104:105], v[106:107]
    v_pk_add_f32 v[108:109], v[108:109], v[110:111]
    v_pk_add_f32 v[44:45], v[104:105], v[108:109]
    """)
    poll("L_ph", [f"global_load_dwordx4 {v4(16+4*t)}, v9, s[26:27] offset:{1024*t} sc1" for t in range(3)] +
                 [f"global_load_dwordx4 v[28:31], v10, s[26:27] offset:3072 sc1"], range(16, 32), 4, slp=slp2)
    TS(8)
    for t in range(4): mfma(112, 16+4*t, 96 if t < 3 else 100, t == 0)
    for t in range(4): mfma(104, 16+4*t, 64+4*t, t == 0)
    for t in range(4): mfma(108, 16+4*t, 80+4*t, t == 0)
    a(f"""
    v_pk_add_f32 v[112:113], v[112:113], v[114:115]
    s_nop 2
    v_pk_add_f32 v[104:105], v[104:105], v[106:107]
    v_pk_fma_f32 v[104:105], v[112:113], v[44:45], v[104:105] op_sel_hi:[1,0,1]
    s_nop 1
    v_pk_add_f32 v[108:109], v[108:109], v[110:111]
    v_pk_fma_f32 v[108:109], v[112:113], v[44:45], v[108:109] op_sel:[0,1,0] op_sel_hi:[1,1,1]
    v_permlane32_swap_b32 v104, v105
    v_add_f32 v104, v104, v105
    v_permlane32_swap_b32 v108, v109
    v_add_f32 v108, v108, v109
    s_nop 1
    v_permlane16_swap_b32 v104, v108
    v_add_f32 v104, v104, v108
    ds_write_b32 v11, v104 offset:{L_RED}
    s_waitcnt lgkmcnt(0)
    s_barrier ; B5
    """)
    for w in range(4):
        for m in range(2): a(f"ds_read_b128 {v4(16+8*w+4*m)}, v117 offset:{L_RED+256*w+64*m}")
    a("s_waitcnt lgkmcnt(4)" if not ts else "s_waitcnt lgkmcnt(0)")
    for i in range(4): a(f"v_pk_add_f32 {v2(16+2*i)}, {v2(16+2*i)}, {v2(24+2*i)}")
    a("s_waitcnt lgkmcnt(0)")
    for i in range(4): a(f"v_pk_add_f32 {v2(32+2*i)}, {v2(32+2*i)}, {v2(40+2*i)}")
    for i in range(4): a(f"v_pk_add_f32 {v2(16+2*i)}, {v2(16+2*i)}, {v2(32+2*i)}")
    a("v_pk_mul_f32 v[16:17], v[16:17], v[20:21]\nv_pk_mul_f32 v[18:19], v[18:19], v[22:23]")
    for i in range(4): a(f"v_cvt_pk_bf16_f32 v{16+i}, v{16+i}, v{16+i}")
    for i in range(4):
        for r in range(4): a(f"v_and_b32 v{64+4*i+r}, v{16+i}, v{12+r}")
        if i: mfma(104, 64+4*(i-1), 48+4*(i-1), i == 1)
    a("s_nop 0")
    mfma(104, 76, 60, False)
    a(f"""
    s_mov_b32 exec_lo, s46
    s_mov_b32 exec_hi, s46
    s_nop 5
    v_cvt_pk_bf16_f32 v104, v104, v105
    v_cvt_pk_bf16_f32 v105, v106, v107
    v_min_u32 v104, -2, v104
    v_min_u32 v105, -2, v105
    global_store_dwordx2 v116, v[104:105], s[26:27] sc1
    """)
    TS(9)
    END()
    a(f"""
    L_kfinal:
    s_cmp_eq_u32 s29, 7
    s_cbranch_scc1 L_end2
    """)
    diag_masks(40)
    a(f"""
    v_lshrrev_b32 v6, 3, v2
    v_and_b32 v7, 1, v3
    v_cmp_eq_u32 vcc, v6, v7
    v_mov_b32 v6, {ONES}
    v_and_b32 v44, v40, v6
    v_and_b32 v45, v41, v6
    v_and_b32 v46, v42, v6
    v_and_b32 v47, v43, v6
    v_cndmask_b32 v40, 0, v44, vcc
    v_cndmask_b32 v41, 0, v45, vcc
    v_cndmask_b32 v42, 0, v46, vcc
    v_cndmask_b32 v43, 0, v47, vcc
    v_lshrrev_b32 v9, 2, v2
    v_lshlrev_b32 v9, 10, v9
    v_lshl_add_u32 v9, v3, 6, v9
    v_lshl_add_u32 v9, v5, 4, v9
    s_lshl_b32 s38, s28, 12
    s_add_u32 s38, s38, {HBUF}
    v_add_u32 v9, s38, v9
    v_lshrrev_b32 v10, 1, v3
    v_mul_u32_u24 v10, 896, v10
    v_lshl_add_u32 v10, v2, 4, v10
    v_lshl_add_u32 v10, v7, 3, v10
    s_lshl_b32 s38, s28, 8
    v_add_u32 v10, s38, v10
    s_lshl_b32 s38, s31, 1
    s_add_u32 s38, s38, s32
    s_sub_u32 s38, s38, 14
    s_lshl_b32 s44, s29, 2
    s_add_u32 s44, s44, s38
    """)
    poll("L_ph2", [f"global_load_dwordx4 {v4(16+4*t)}, v9, s[26:27] offset:{256*t} sc1" for t in range(4)], range(16, 32), 4,
         mask=("s46", "s46"), slp=slp2)
    TS(7)
    for t in range(4): mfma(48, 40, 16+4*t, t == 0)
    a(f"""
    s_mov_b32 exec_lo, s46
    s_mov_b32 exec_hi, s46
    s_nop 5
    v_cvt_pk_bf16_f32 v48, v48, v49
    v_cvt_pk_bf16_f32 v49, v50, v51
    ds_write_b64 v10, v[48:49] offset:{L_XN}
    s_mov_b64 exec, -1
    s_waitcnt lgkmcnt(0)
    s_barrier ; B4
    s_cmp_lg_u32 s28, 0
    s_cbranch_scc1 L_end2
    v_and_b32 v4, 31, v0
    v_cmp_gt_u32 s[36:37], 28, v4
    s_cmp_ge_u32 s44, 14
    s_cselect_b32 s38, 896, 0
    v_lshl_add_u32 v12, v4, 5, s38
    """)
    for i in range(8): a(f"v_mov_b32 v{16+i}, 0")
    a(f"""
    v_and_b32 v4, 1, v2
    v_lshlrev_b32 v13, 5, v4
    v_lshl_add_u32 v13, v7, 4, v13
    v_bfe_u32 v4, v2, 1, 1
    v_lshl_add_u32 v13, v4, 3, v13
    s_lshl_b32 s38, s44, 6
    v_add_u32 v13, s38, v13
    ds_read_b64 v[60:61], v13 offset:{L_XN}
    s_mov_b64 exec, s[36:37]
    ds_read_b128 v[16:19], v12 offset:{L_XN}
    ds_read_b128 v[20:23], v12 offset:{L_XN+16}
    s_mov_b64 exec, -1
    s_mul_i32 s38, s44, 7168
    s_add_u32 s38, s38, {PBUF+4096}
    v_lshl_add_u32 v9, v0, 4, s38
    v_mov_b32 v15, 0
    v_mov_b32 v14, s33
    s_waitcnt lgkmcnt(0)
    """)
    ln_stats(16, 64, 48, 50, 51)
    a(f"""
    v_rcp_f32 v50, v50
    v_and_b32 v63, 0xffff0000, v61
    v_lshlrev_b32 v62, 16, v61
    v_and_b32 v61, 0xffff0000, v60
    v_lshlrev_b32 v60, 16, v60
    v_mul_f32 v50, v50, v50
    """)
    TS(8)
    poll("L_pp", [f"global_load_dwordx4 {v4(64+4*t)}, v9, s[26:27] offset:{1024*t-4096} sc1" for t in range(7)], range(64, 92), 4, slp=slp3)
    TS(5)
    for t in range(7): mfma(16, 44, 64+4*t, t == 0)
    a("s_cmp_lg_u32 s44, 0\ns_nop 6")
    for n in (4, 8):
        for r in range(4): a(f"v_add_f32_dpp v{16+r}, v{16+r}, v{16+r} row_ror:{n} row_mask:0xf bank_mask:0xf")
    a(f"""
    s_mov_b64 exec, 0x000f000f
    v_pk_mul_f32 v[16:17], v[16:17], v[50:51] op_sel_hi:[1,0]
    v_pk_mul_f32 v[18:19], v[18:19], v[50:51] op_sel_hi:[1,0]
    v_cvt_pk_bf16_f32 v16, v16, v17
    v_cvt_pk_bf16_f32 v18, v18, v19
    v_and_b32 v17, 0xffff0000, v16
    v_lshlrev_b32 v16, 16, v16
    v_and_b32 v19, 0xffff0000, v18
    v_lshlrev_b32 v18, 16, v18
    v_pk_add_f32 v[16:17], v[16:17], v[60:61]
    v_pk_add_f32 v[18:19], v[18:19], v[62:63]
    v_cvt_pk_bf16_f32 v16, v16, v17
    v_cvt_pk_bf16_f32 v17, v18, v19
    global_store_dwordx2 v13, v[16:17], s[22:23]
    s_cbranch_scc1 L_end3
    s_mov_b64 exec, 1
    global_store_dword v15, v14, s[26:27] offset:{EPOCH} sc1
    L_end3:
    """)
    TS(9)
    END()
    if ts and diag:
        wg, wv, i0, i1 = diag
        a(f"""
        L_tsout:
        s_memrealtime s[80:81]
        s_cmp_lg_u32 s2, {wg}
        s_cbranch_scc1 L_dend
        s_cmp_lg_u32 s28, {wv}
        s_cbranch_scc1 L_dend
        s_waitcnt lgkmcnt(0)
        s_sub_u32 s38, s{60+2*i1}, s{60+2*i0}
        s_min_u32 s38, s38, 5000
        s_add_u32 s38, s38, 6000
        L_dspin:
        s_memrealtime s[82:83]
        s_waitcnt lgkmcnt(0)
        s_sub_u32 s39, s82, s60
        s_cmp_lt_u32 s39, s38
        s_cbranch_scc1 L_dspin
        L_dend:
        s_endpgm
        """)
    elif ts:
        a(f"""
        L_tsout:
        s_memrealtime s[80:81]
        s_mov_b64 exec, 1
        s_lshl_b32 s38, s2, 3
        s_add_u32 s38, s38, s28
        s_lshl_b32 s38, s38, 6
        s_add_u32 s38, s38, {TSBUF}
        v_mov_b32 v4, s38
        s_mov_b32 s82, s48
        s_waitcnt lgkmcnt(0)
        """)
        for i in range(12): a(f"v_mov_b32 v{16+i}, s{60+2*i}")
        for i in range(3): a(f"global_store_dwordx4 v4, {v4(16+4*i)}, s[26:27] offset:{16*i}")
        a("s_endpgm")
    if skip:
        def drop(t):
            if "q" in skip and "s[10:11]" in t and t.startswith("global_load"): return True
            if "c" in skip and t.startswith("global_store_dwordx4 v13, v[24:27]"): return True
            if "o" in skip and "s[12:13]" in t and t.startswith("global_load"): return True
            if "f" in skip and t.startswith("global_load") and ("s[16:17]" in t or "s[18:19]" in t or "s[20:21]" in t): return True
            return False
        a.items = [(k, "s_nop 0" if drop(t) else t, n) for k, t, n in a.items]
    if hop:
        nb, size = insert_pads(a, lambda n, nb: f"Lpad{n+3}" if n + 3 < nb else "L_back")
    errs = check_hazards(a.items)
    for e in errs: print(e, file=sys.stderr)
    hdr = open("cdna_kernels/" + KNAME[:-7] + ".s.ref").read().split("; Override")[0]
    return f"""{hdr}; @launch grid=(256,1,1) block=(512,1,1) lds={LDS_BYTES}
.amdgcn_target "amdgcn-amd-amdhsa--gfx950"
.text
.globl {KNAME}
.p2align 10
.fill 64, 4, 0xbf810000
.p2align 8
.type {KNAME},@function
{KNAME}:
{a.text()}
.section .rodata,"a"
.p2align 6
.amdhsa_kernel {KNAME}
  .amdhsa_next_free_vgpr 256
  .amdhsa_next_free_sgpr 96
  .amdhsa_accum_offset 256
  .amdhsa_group_segment_fixed_size 0
  .amdhsa_kernarg_size 96
  .amdhsa_user_sgpr_count 2
  .amdhsa_user_sgpr_kernarg_segment_ptr 1
  .amdhsa_system_sgpr_workgroup_id_x 1
  .amdhsa_float_denorm_mode_32 3
.end_amdhsa_kernel
"""

if __name__ == "__main__":
    kw = {}
    out = sys.argv[1]
    for x in sys.argv[2:]:
        k, v = x.split("=")
        kw[k] = eval(v) if v[:1].isdigit() or v[:1] == "(" or v in ("True", "False") else v.replace("+", " ")
    open(out, "w").write(gen(**kw))
```

```python
import sys, struct
from alib import *

def f2u(x): return struct.unpack("<I", struct.pack("<f", x))[0]
LOG2E = 1.4426950408889634
ONES = "0x3f803f80"

EPOCH, READY, QBUF = 0, 0x400, 0xA0000
CLR = 0x20000
OBUF = CLR
LSE, HBUF, PBUF = CLR + 0x40000, CLR + 0x40800, CLR + 0x44000
TSBUF = 0x100000
L_XN, L_STAT, L_FLAG, L_RED, L_CS, L_Q = 0, 0x700, 0x780, 0x800, 0x1000, 0x1400
L_P, L_ORED, L_XD, L_W = 0x2000, 0x6000, 0x8000, 0xC000
L_G, L_U = L_W, L_W + 14336
L_DUMMY = 0x9000
LDS_BYTES = 0x14800
TMO = 1 << 17

def gen(ts=0, qfl="nt", kvfl="nt", wfl="", ffl="", dfl="nt", hop=True, opiece=32, fast=True, win=6, krot=1, slots=(2, 9, 17, 24),
        wop="KM", worot=0, fp="MLLL", frot=1, wdp="M", slp1=1, slp2=0, slp2f=0, slp3=0, slpthr=16, d3=0, diag=None, skip=""):
    a = Asm()
    P = opiece; lp = P.bit_length() - 1
    def TS(i):
        if ts == 1 or (ts and i == 0): a(f"s_memrealtime s[{60+2*i}:{61+2*i}]")
    def END():
        a("s_branch L_tsout" if ts else "s_endpgm")
    def v4(r): return f"v[{r}:{r+3}]"
    def v2(r): return f"v[{r}:{r+1}]"
    def mfma(d, A, B, first): a(f"v_mfma_f32_16x16x32_bf16 {v4(d)}, {v4(A)}, {v4(B)}, {'0' if first else v4(d)}")
    def xrow(op, v, t, sixteen=True, thirty2=True):
        for name, on in (("16", sixteen), ("32", thirty2)):
            if on:
                a(f"v_mov_b32 v{t}, v{v}\ns_nop 1\nv_permlane{name}_swap_b32 v{v}, v{t}\n{op} v{v}, v{v}, v{t}")
    def inrow_add(v):
        for n in (8, 4, 2, 1):
            a(f"s_nop 1\nv_add_f32_dpp v{v}, v{v}, v{v} row_ror:{n} row_mask:0xf bank_mask:0xf")
    def rbf(v):
        a(f"v_cvt_pk_bf16_f32 v{v}, v{v}, v{v}\nv_and_b32 v{v}, s94, v{v}")
    def ln_stats(raw, f, m, d, t):
        for i in range(8):
            a(f"v_lshlrev_b32 v{f+2*i}, 16, v{raw+i}\nv_and_b32 v{f+2*i+1}, s94, v{raw+i}")
        a(f"v_add_f32 v{m}, v{f}, v{f+1}")
        for i in range(2, 16): a(f"v_add_f32 v{m}, v{m}, v{f+i}")
        inrow_add(m); xrow("v_add_f32", m, t, True, False)
        a(f"v_mul_f32 v{m}, {hex(f2u(1/448))}, v{m}")
        a(f"v_sub_f32 v{t}, v{f}, v{m}\nv_mul_f32 v{d}, v{t}, v{t}")
        for i in range(1, 16): a(f"v_sub_f32 v{t}, v{f+i}, v{m}\nv_fmac_f32 v{d}, v{t}, v{t}")
        a(f"v_cndmask_b32 v{d}, 0, v{d}, s[36:37]")
        inrow_add(d); xrow("v_add_f32", d, t, True, False)
        a(f"v_mul_f32 v{d}, {hex(f2u(1/448))}, v{d}")
        rbf(d)
        a(f"v_add_f32 v{d}, {hex(f2u(1e-5))}, v{d}")
        rbf(d)
        a(f"v_sqrt_f32 v{d}, v{d}")
        rbf(m)
        rbf(d)
    def diag_masks(base, t0=4, t1=6):
        a(f"""v_and_b32 v{t0}, 1, v2
        v_lshlrev_b32 v{t0}, 4, v{t0}
        v_mov_b32 v{t1}, 0xffff
        v_lshlrev_b32 v{t1}, v{t0}, v{t1}
        v_bfe_u32 v{t0}, v2, 1, 2""")
        for r in range(4):
            a(f"v_cmp_eq_u32 vcc, {r}, v{t0}\ns_nop 1\nv_cndmask_b32 v{base+r}, 0, v{t1}, vcc")
    def poll(name, loads, regs_, t, mask=None, first_issued=False, slp=0):
        a(f"s_mov_b32 s40, {TMO}")
        if mask: a(f"s_mov_b32 exec_lo, {mask[0]}\ns_mov_b32 exec_hi, {mask[1]}")
        if first_issued: a(f"s_branch {name}_chk")
        elif slp: a(f"s_branch {name}_ld")
        a(f"{name}:")
        if slp:
            a(f"s_bcnt1_i32_b64 s47, exec\ns_cmp_le_u32 s47, {slpthr}\ns_cbranch_scc1 {name}_ld\ns_sleep {slp}\n{name}_ld:")
        for l in loads: a(l)
        a(f"s_sub_u32 s40, s40, 1\ns_cbranch_scc1 {name}_done")
        a(f"{name}_chk:\ns_waitcnt vmcnt(0)")
        r = list(regs_)
        a(f"v_max3_u32 v{t}, v{r[0]}, v{r[1]}, v{r[2]}"); r = r[3:]
        while len(r) >= 2:
            a(f"v_max3_u32 v{t}, v{t}, v{r[0]}, v{r[1]}"); r = r[2:]
        if r: a(f"v_max_u32 v{t}, v{t}, v{r[0]}")
        a(f"v_cmp_eq_u32 vcc, -1, v{t}")
        a(f"s_and_b64 exec, exec, vcc")
        a.nopad += 1
        a(f"s_cbranch_scc1 {name}\n{name}_done:\ns_mov_b64 exec, -1")
        a.nopad -= 1
    def after(n, upto):
        return (upto - 1 - n) + sum(1 for x in slots if n <= x < upto)
    def oreduce(tag):
        a("s_cmp_eq_u32 s48, 4\ns_waitcnt lgkmcnt(0)\ns_barrier ; B3")
        TS(6)
        for i in range(4): a(f"ds_read_b64 {v2(24+2*i)}, v13 offset:{L_ORED+2048*i}")
        a(f"""
        s_waitcnt lgkmcnt(0)
        v_pk_mul_f32 v[24:25], v[24:25], v[16:17] op_sel_hi:[1,0]
        v_pk_mul_f32 v[28:29], v[28:29], v[20:21] op_sel_hi:[1,0]
        v_pk_fma_f32 v[24:25], v[26:27], v[18:19], v[24:25] op_sel_hi:[1,0,1]
        v_pk_fma_f32 v[28:29], v[30:31], v[22:23], v[28:29] op_sel_hi:[1,0,1]
        v_pk_add_f32 v[24:25], v[24:25], v[28:29]
        v_cvt_pk_bf16_f32 v24, v24, v25
        v_min_u32 v24, -2, v24
        s_cbranch_scc0 L_oslow{tag}
        global_store_dword v14, v24, s[26:27]
        L_opub{tag}:
        """)
        if "t" in skip: END()
    def oslow(tag):
        a(f"L_oslow{tag}:\nglobal_store_dword v14, v24, s[26:27] sc1\ns_branch L_opub{tag}")
    def wdload():
        a("s_mov_b32 exec_lo, s46\ns_mov_b32 exec_hi, s46")
        for i in range(4): a(f"global_load_dwordx4 {v4(48+4*i)}, v43, s[20:21] offset:{896*i} {dfl}")
        a("s_mov_b64 exec, -1")

    def wo_w(ph):
        for hv in range(2):
            if wop[hv] == ph:
                a(f"s_mov_b32 m0, s{92+hv}\ns_nop 0")
                for i in range(4):
                    a(f"global_load_lds_dwordx4 v{44+hv}, s[12:13] offset:{1024*i} {wfl}")
                    if i < 3: a(f"v_add_u32 v{44+hv}, {16*896-1024}, v{44+hv}")
    def ffn_w(ph):
        for k in range(4):
            if fp[k] == ph:
                a(f"s_mov_b32 exec_hi, s{88+k}")
                for lb, sb in ((L_G, "s[16:17]"), (L_U, "s[18:19]")):
                    a(f"s_add_u32 m0, s{84+k}, {lb}\ns_nop 0")
                    a(f"global_load_lds_dwordx4 v{44+k}, {sb} {ffl}")
                a("s_mov_b32 exec_hi, -1")
        if wdp == ph: wdload()
    def wphase(ph):
        if ph in wop:
            a(f"s_cmp_ge_u32 s30, 14\ns_cbranch_scc1 L_nowo{ph}")
            wo_w(ph)
            a(f"L_nowo{ph}:")
        if ph in fp + wdp:
            a(f"s_sub_u32 s38, s30, 16\ns_cmp_ge_u32 s38, 14\ns_cbranch_scc1 L_noffn{ph}")
            ffn_w(ph)
            a(f"L_noffn{ph}:")

    TS(0)
    a(f"""
    s_cmp_ge_u32 s2, 256
    s_cbranch_scc1 L_exit
    s_load_dwordx16 s[4:19], s[0:1], 0
    s_load_dwordx8 s[20:27], s[0:1], 64
    v_lshrrev_b32 v1, 6, v0
    v_and_b32 v0, 63, v0
    v_readfirstlane_b32 s28, v1
    s_and_b32 s29, s2, 7
    s_lshr_b32 s30, s2, 3
    s_lshr_b32 s31, s2, 7
    s_and_b32 s32, s30, 15
    v_and_b32 v2, 15, v0
    v_lshrrev_b32 v3, 4, v0
    v_and_b32 v5, 3, v0
    s_mov_b32 s94, 0xffff0000
    s_cmp_eq_u32 s28, 4
    s_cbranch_scc1 L_qwave
    """)
    if hop:
        a.nopad += 1
        a(f"""
        s_cmp_lt_u32 s28, 4
        s_cbranch_scc1 L_setup
        s_mov_b64 exec, 0
        s_cmp_eq_u32 s28, 6
        s_cbranch_scc1 Lpad3
        s_cmp_eq_u32 s28, 7
        s_cbranch_scc1 Lpad4
        s_branch Lpad2
        L_back:
        s_mov_b64 exec, -1
        """)
        a.nopad -= 1
    a(f"""
    L_setup:
    s_lshl_b32 s34, s31, 3
    s_add_u32 s34, s34, s29
    s_lshl_b32 s34, s34, 9
    s_and_b32 s35, s28, 3
    s_lshl_b32 s38, s35, 4
    s_add_u32 s38, s38, s32
    s_add_u32 s34, s34, s38
    s_lshl_b32 s34, s34, 4
    s_lshl_b32 s38, s35, 2
    {"s_xor_b32 s38, s38, s32" if krot == 1 else "s_nop 0"}
    s_add_u32 s34, s34, s38
    s_lshl_b32 s34, s34, 11
    s_add_u32 s34, s34, {28672*512}
    s_movk_i32 s50, 0x800
    s_movk_i32 s51, 0x1800
    s_movk_i32 s52, 0x3800
    s_movk_i32 s53, 0x7800
    s_mul_i32 s45, s29, 14
    s_add_u32 s45, s45, s32
    v_lshrrev_b32 v4, 2, v2
    v_lshlrev_b32 v4, 9, v4
    v_lshl_add_u32 v4, v3, 6, v4
    v_lshl_add_u32 v4, v5, 4, v4
    v_add_u32 v8, s34, v4
    s_lshl_b32 s38, s29, 2
    s_add_u32 s38, s38, s35
    s_mul_i32 s38, s38, {128*896}
    s_lshl_b32 s39, s32, 6
    s_add_u32 s38, s38, s39
    v_lshrrev_b32 v4, 2, v0
    v_mul_u32_u24 v4, 896, v4
    v_lshl_add_u32 v4, v5, 4, v4
    v_add_u32 v4, s38, v4
    s_and_b32 s38, s32, {worot}
    s_lshl_b32 s92, s38, 12
    s_mul_i32 s38, s38, {64*896}
    v_add_u32 v44, s38, v4
    s_sub_u32 s38, {64*896}, s38
    v_add_u32 v45, s38, v4
    s_lshl_b32 s38, s35, 13
    s_add_u32 s92, s92, s38
    s_add_u32 s92, s92, {L_W}
    s_xor_b32 s93, s92, 0x1000
    """)
    useslots = "K" in wop or "V" in wop
    if not useslots: slots = ()
    if useslots:
        a(f"""
        v_mov_b32 v9, 0x2000
        s_movk_i32 s58, -1024
        s_mov_b32 m0, {L_DUMMY}
        s_cmp_ge_u32 s30, 14
        s_cbranch_scc1 L_sdone
        """)
        for hv in range(2):
            if wop[hv] in "KV":
                a(f"""
                s_cmp_{"ge" if wop[hv] == "K" else "lt"}_u32 s28, 4
                s_cbranch_scc1 L_sno{hv}
                v_mov_b32 v9, v{44+hv}
                s_movk_i32 s58, {16*896-1024}
                s_mov_b32 m0, s{92+hv}
                L_sno{hv}:
                """)
    a(f"""
    L_sdone:
    s_cmp_ge_u32 s28, 4
    s_waitcnt lgkmcnt(0)
    s_cbranch_scc1 L_vpre
    s_mov_b64 s[54:55], s[6:7]
    s_load_dword s33, s[26:27], {EPOCH}
    """)
    TS(1)
    a("L_stream:")
    for n in range(32):
        i, hf = n // 2, n % 2
        if win and n >= win: a(f"s_waitcnt vmcnt({after(n-win, n)})")
        a(f"global_load_dwordx4 {v4(128+4*n)}, v8, s[54:55] offset:{hf*256} {kvfl}")
        if hf and i < 15:
            tz = ((i + 1) & -(i + 1)).bit_length() - 1
            a(f"v_xor_b32 v8, s{50+tz}, v8")
        for j, x in enumerate(slots):
            if x == n:
                a(f"global_load_lds_dwordx4 v9, s[12:13] offset:{1024*j} {wfl}")
                if j < 3: a("v_add_u32 v9, s58, v9")
    a("""
    s_cbranch_scc0 L_kwave
    s_branch L_vpost
    L_exit:
    s_endpgm
    .p2align 10
    """)
    a(f"""
    L_qwave:
    s_setprio 3
    v_and_b32 v4, 31, v0
    v_cmp_gt_u32 s[36:37], 28, v4
    v_lshrrev_b32 v7, 5, v0
    v_mul_u32_u24 v7, 896, v7
    v_lshl_add_u32 v12, v4, 5, v7
    s_and_b32 s41, s29, 1
    s_lshl_b32 s41, s41, 2
    s_lshr_b32 s38, s30, 3
    s_add_u32 s41, s41, s38
    s_lshr_b32 s42, s29, 1
    s_lshl_b32 s42, s42, 3
    s_and_b32 s38, s30, 7
    s_add_u32 s42, s42, s38
    s_mul_i32 s38, s41, {56*8192}
    s_lshl_b32 s39, s42, 8
    s_add_u32 s38, s38, s39
    v_mul_u32_u24 v6, {14*8192}, v3
    v_lshl_add_u32 v6, v2, 4, v6
    v_add_u32 v112, s38, v6
    s_movk_i32 s38, 0x2000
    """)
    for i in range(1, 14): a(f"v_add_u32 v{112+i}, s38, v{111+i}")
    for i in range(4): a(f"v_mov_b32 v{24+i}, -1")
    a(f"""
    s_lshl_b32 s38, s2, 11
    s_add_u32 s38, s38, {CLR}
    v_lshl_add_u32 v13, v0, 4, s38
    v_min_u32 v14, {896+27*32}, v12
    s_waitcnt lgkmcnt(0)
    global_load_dwordx4 v[16:19], v14, s[4:5]
    global_load_dwordx4 v[20:23], v14, s[4:5] offset:16
    """)
    for i in range(14): a(f"global_load_dwordx4 {v4(128+4*i)}, v{112+i}, s[10:11] {qfl}")
    a(f"""
    global_store_dwordx4 v13, v[24:27], s[26:27] sc1
    global_store_dwordx4 v13, v[24:27], s[26:27] offset:1024 sc1
    s_load_dword s33, s[26:27], {EPOCH}
    v_mov_b32 v28, 0
    ds_write_b32 v28, v28 offset:{L_FLAG}
    """)
    TS(1)
    diag_masks(8)
    a("s_waitcnt vmcnt(16)")
    for i in range(8): a(f"v_cndmask_b32 v{16+i}, 0, v{16+i}, s[36:37]")
    ln_stats(16, 32, 48, 49, 50)
    a("v_rcp_f32 v49, v49")
    for i in range(16): a(f"v_sub_f32 v{32+i}, v{32+i}, v48")
    for i in range(8):
        a(f"v_cvt_pk_bf16_f32 v{16+i}, v{32+2*i}, v{33+2*i}")
    for i in range(8):
        a(f"v_lshlrev_b32 v{32+2*i}, 16, v{16+i}\nv_and_b32 v{33+2*i}, s94, v{16+i}")
    for i in range(16): a(f"v_mul_f32 v{32+i}, v{32+i}, v49")
    for i in range(16): a(f"v_cvt_pk_bf16_f32 v{32+i}, v{32+i}, v{32+i}")
    a(f"""
    v_lshlrev_b32 v12, 1, v12
    s_mov_b64 exec, s[36:37]
    """)
    for i in range(4): a(f"ds_write_b128 v12, {v4(32+4*i)} offset:{L_XD+16*i}")
    a(f"""
    s_mov_b64 exec, -1
    v_lshrrev_b32 v4, 3, v2
    v_mul_u32_u24 v4, 1792, v4
    v_mul_u32_u24 v7, 56, v3
    s_mul_i32 s38, s41, 224
    v_add3_u32 v7, v7, v4, s38
    s_waitcnt lgkmcnt(0)
    """)
    for i in range(7): a(f"ds_read_b64 {v2(16+2*i)}, v7 offset:{L_XD+8*i}")
    a(f"""
    s_add_u32 s33, s33, 0x9e3779b0
    s_andn2_b32 s33, s33, 15
    s_getreg_b32 s39, hwreg(HW_REG_XCC_ID, 0, 4)
    s_or_b32 s39, s39, s33
    s_lshr_b32 s38, s42, 2
    s_lshl_b32 s38, s38, 15
    s_lshl_b32 s41, s41, 11
    s_add_u32 s38, s38, s41
    s_and_b32 s41, s42, 3
    s_lshl_b32 s41, s41, 9
    s_add_u32 s38, s38, s41
    s_add_u32 s38, s38, {QBUF}
    v_lshrrev_b32 v4, 5, v0
    v_lshlrev_b32 v4, 14, v4
    v_and_b32 v6, 31, v0
    v_lshl_add_u32 v4, v6, 4, v4
    v_add_u32 v4, s38, v4
    s_lshl_b32 s41, s29, 5
    s_add_u32 s41, s41, s30
    s_lshl_b32 s41, s41, 2
    v_mov_b32 v7, s41
    v_mov_b32 v36, s39
    s_lshr_b32 s41, s33, 4
    v_mov_b32 v37, s41
    v_lshrrev_b32 v38, 7, v37
    v_lshrrev_b32 v39, 14, v37
    v_lshrrev_b32 v40, 21, v37
    s_movk_i32 s41, 0x7f
    s_waitcnt lgkmcnt(0)
    """)
    for i in range(14):
        for r in range(4): a(f"v_and_b32 v{192+4*i+r}, v{16+i}, v{8+r}")
    a("s_waitcnt vmcnt(0)")
    TS(2)
    for i in range(14): mfma(32, 192+4*i, 128+4*i, i == 0)
    a("s_nop 7")
    for r in range(4): a(f"v_add_u32 v{32+r}, 64, v{32+r}")
    for r in range(4): a(f"v_bfi_b32 v{32+r}, s41, v{37+r}, v{32+r}")
    a(f"""
    global_store_dwordx4 v4, v[32:35], s[26:27] sc1
    s_mov_b64 exec, 1
    global_store_dword v7, v36, s[26:27] offset:{READY} sc1
    s_mov_b64 exec, -1
    s_setprio 0
    """)
    TS(3)
    a("s_branch L_setup")
    a(f"""
    L_vpre:
    v_lshlrev_b32 v4, 9, v3
    v_lshl_add_u32 v4, v2, 4, v4
    v_add_u32 v8, s34, v4
    s_mov_b64 s[54:55], s[8:9]
    """)
    diag_masks(12)
    a(f"""
    s_lshl_b32 s38, s35, 12
    v_lshl_add_u32 v4, v0, 4, s38
    s_lshl_b32 s38, s35, 11
    v_lshrrev_b32 v7, 1, v3
    v_lshlrev_b32 v7, 10, v7
    v_lshl_add_u32 v7, v2, 5, v7
    v_and_b32 v6, 1, v3
    v_lshl_add_u32 v7, v6, 4, v7
    v_add_u32 v7, s38, v7
    s_cmp_ge_u32 s28, 4
    s_barrier ; B1
    s_branch L_stream
    L_vpost:
    """)
    if "V" in wop:
        last = max(slots)
        if not (win and last <= 31 - win - 1): a(f"s_waitcnt vmcnt({31-last})")
    TS(4)
    a("s_barrier ; B2")
    TS(5)
    for i in range(4): a(f"ds_read_b128 {v4(16+4*i)}, v4 offset:{L_P+1024*i}")
    a("s_waitcnt lgkmcnt(0)")
    for i in range(16):
        for r in range(4): a(f"v_and_b32 v{64+4*i+r}, v{16+i}, v{12+r}")
        if i:
            for hf in range(2):
                n = 2*(i-1)+hf
                if not win or n > 31 - win: a(f"s_waitcnt vmcnt({after(n, 32)})")
                mfma(32+4*hf, 64+4*(i-1), 128+4*n, i == 1)
    for n in (30, 31):
        a(f"s_waitcnt vmcnt({after(n, 32)})")
        mfma(32+4*(n%2), 64+60, 128+4*n, False)
    TS(6)
    a(f"""
    s_nop 5
    ds_write_b128 v7, v[32:35] offset:{L_ORED}
    s_nop 0
    ds_write_b128 v7, v[36:39] offset:{L_ORED+512}
    s_waitcnt lgkmcnt(0)
    s_barrier ; B3
    L_end:
    """)
    END()
    a("L_kwave:")
    TS(2)
    a(f"""
    s_barrier ; B1
    s_lshl_b32 s42, s29, 1
    s_add_u32 s42, s42, s31
    s_lshl_b32 s38, s42, 14
    s_lshl_b32 s41, s28, 9
    s_add_u32 s38, s38, s41
    s_add_u32 s38, s38, {QBUF+4096}
    v_lshrrev_b32 v7, 5, v0
    v_lshlrev_b32 v12, 13, v7
    v_and_b32 v13, 31, v0
    v_lshl_add_u32 v12, v13, 4, v12
    v_add_u32 v12, s38, v12
    v_lshlrev_b32 v15, 4, v0
    v_lshrrev_b32 v4, 3, v2
    v_lshlrev_b32 v6, 9, v4
    v_lshl_add_u32 v6, v3, 6, v6
    v_lshl_add_u32 v6, v5, 4, v6
    v_mov_b32 v14, 0
    v_and_b32 v10, 1, v3
    v_mul_u32_u24 v10, 896, v10
    v_lshl_add_u32 v10, v2, 2, v10
    s_min_u32 s38, s32, 13
    s_lshl_b32 s38, s38, 6
    v_add_u32 v10, s38, v10
    s_cmp_ge_u32 s32, 14
    s_cselect_b64 s[54:55], s[22:23], s[4:5]
    global_load_dword v11, v10, s[54:55]
    s_mul_i32 s38, s45, {16*896}
    s_lshl_b32 s39, s28, 8
    s_add_u32 s38, s38, s39
    v_mul_u32_u24 v43, {4*896}, v3
    v_lshl_add_u32 v43, v2, 4, v43
    v_add_u32 v43, s38, v43
    s_cmp_eq_u32 s28, 3
    s_cselect_b32 s46, 0x00ff00ff, -1
    v_mov_b32 v46, 0
    v_mov_b32 v47, 0
    s_cmp_lt_u32 s30, 14
    s_cbranch_scc1 L_nofa
    s_lshl_b32 s38, s45, 5
    s_mul_i32 s39, s28, {112*3584}
    s_add_u32 s38, s38, s39
    v_lshrrev_b32 v9, 1, v0
    v_mul_u32_u24 v9, 3584, v9
    v_and_b32 v8, 1, v0
    v_lshl_add_u32 v9, v8, 4, v9
    v_add_u32 v9, s38, v9
    s_and_b32 s41, s45, {3 if frot else 0}
    s_mul_i32 s39, s28, 3584
    """)
    for k in range(4):
        a(f"""s_xor_b32 s38, s41, {k}
        s_cmp_eq_u32 s38, 3
        s_cselect_b32 s{88+k}, 0, -1
        s_lshl_b32 s{84+k}, s38, 10
        s_add_u32 s{84+k}, s{84+k}, s39
        s_mul_i32 s38, s38, {32*3584}
        v_add_u32 v{44+k}, s38, v9""")
    a("L_nofa:")
    wphase("E")
    a(f"""
    s_waitcnt lgkmcnt(0)
    s_add_u32 s33, s33, 0x9e3779b0
    s_andn2_b32 s33, s33, 15
    s_lshr_b32 s56, s33, 4
    s_lshr_b32 s57, s33, 11
    s_lshr_b32 s58, s33, 18
    s_lshr_b32 s59, s33, 25
    s_getreg_b32 s39, hwreg(HW_REG_XCC_ID, 0, 4)
    s_or_b32 s39, s39, s33
    v_mov_b32 v32, s39
    v_mov_b32 v33, s39
    v_mov_b32 v34, s39
    v_mov_b32 v35, s39
    s_mov_b32 s40, {TMO}
    {"s_branch L_pq_done" if "g" in skip else ""}
    L_pq:
    """)
    for i in range(4): a(f"global_load_dwordx4 {v4(16+4*i)}, v12, s[26:27] offset:{2048*i-4096} sc1")
    a(f"""
    s_cmp_lg_u32 s28, 0
    s_cbranch_scc1 L_pq_nordy
    global_load_dwordx4 v[32:35], v15, s[26:27] offset:{READY} sc1
    L_pq_nordy:
    s_sub_u32 s40, s40, 1
    s_cbranch_scc1 L_pq_done
    s_waitcnt vmcnt(0)
    v_max3_u32 v36, v32, v33, v34
    v_min3_u32 v37, v32, v33, v34
    v_max3_u32 v36, v36, v35, s39
    v_min3_u32 v37, v37, v35, s39
    v_xor_b32 v38, s56, v16
    """)
    for i in range(1, 16): a(f"v_bitop3_b32 v38, v{16+i}, s{56+i%4}, v38 bitop3:0xbe")
    a(f"""
    v_xor_b32 v39, v36, v37
    v_lshrrev_b32 v39, 4, v39
    v_and_b32 v38, 0x7f, v38
    v_or_b32 v38, v38, v39
    v_cmp_ne_u32 vcc, 0, v38
    s_and_b64 exec, exec, vcc
    """)
    a.nopad += 1
    a("s_cbranch_scc1 L_pq\nL_pq_done:\ns_mov_b64 exec, -1")
    a.nopad -= 1
    a("s_movk_i32 s38, 0xff80\ns_waitcnt vmcnt(0)\nv_cmp_ne_u32 vcc, v36, v37")
    for i in range(16): a(f"v_and_b32 v{16+i}, s38, v{16+i}")
    for i in range(4): a(f"v_pk_add_f32 {v2(16+2*i)}, {v2(16+2*i)}, {v2(24+2*i)}")
    a(f"""
    v_pk_add_f32 v[16:17], v[16:17], v[20:21]
    v_pk_add_f32 v[18:19], v[18:19], v[22:23]
    s_lshl_b32 s38, s29, 3
    s_lshr_b64 s[48:49], vcc, s38
    s_and_b32 s48, s48, 0xff
    s_cselect_b32 s48, 0x101, {1 if fast else 0x101}
    v_permlane32_swap_b32 v16, v18
    v_permlane32_swap_b32 v17, v19
    v_pk_add_f32 v[16:17], v[16:17], v[18:19]
    v_cvt_pk_bf16_f32 v16, v16, v17
    v_lshlrev_b32 v7, 2, v7
    v_lshl_add_u32 v7, v2, 4, v7
    v_and_b32 v13, 1, v3
    v_lshl_add_u32 v7, v13, 3, v7
    s_lshl_b32 s38, s28, 8
    v_add_u32 v7, s38, v7
    v_mov_b32 v13, s48
    ds_write_b32 v7, v16 offset:{L_Q}
    s_mov_b64 exec, 1
    ds_add_u32 v14, v13 offset:{L_FLAG}
    s_mov_b64 exec, -1
    L_qwait:
    ds_read_b32 v13, v14 offset:{L_FLAG}
    s_sub_u32 s40, s40, 1
    s_cbranch_scc1 L_qgot
    s_waitcnt lgkmcnt(0)
    v_readfirstlane_b32 s48, v13
    s_and_b32 s38, s48, 0xff
    s_cmp_eq_u32 s38, 4
    s_cbranch_scc1 L_qgot
    s_sleep 1
    s_branch L_qwait
    L_qgot:
    ds_read_b128 v[32:35], v6 offset:{L_Q}
    ds_read_b128 v[36:39], v6 offset:{L_Q+256}
    s_mov_b32 s41, {hex(f2u(LOG2E / 16))}
    s_waitcnt lgkmcnt(0)
    """)
    TS(3)
    for i in range(16):
        mfma(64+4*i, 128+8*i, 32, True); mfma(64+4*i, 132+8*i, 36, False)
    for r in range(4):
        for i in range(16):
            if r == 0: a(f"v_mov_b32_dpp v{16+i}, v{64+4*i} quad_perm:[0,0,0,0] row_mask:0xf bank_mask:0xf")
            else: a(f"v_add_f32_dpp v{16+i}, v{64+4*i+r}, v{16+i} quad_perm:[{r},{r},{r},{r}] row_mask:0xf bank_mask:0xf")
    for i in range(8): a(f"v_cvt_pk_bf16_f32 v{32+i}, v{16+2*i}, v{17+2*i}")
    for i in range(8): a(f"v_lshlrev_b32 v{16+2*i}, 16, v{32+i}\nv_and_b32 v{17+2*i}, s94, v{32+i}")
    a("v_max3_f32 v40, v16, v17, v18")
    for i in range(6): a(f"v_max3_f32 v40, v40, v{19+2*i}, v{20+2*i}")
    a("v_max_f32 v40, v40, v31")
    xrow("v_max_f32", 40, 42)
    for i in range(16): a(f"v_sub_f32 v{16+i}, v{16+i}, v40")
    for i in range(16): a(f"v_mul_f32 v{16+i}, s41, v{16+i}")
    for i in range(16): a(f"v_exp_f32 v{16+i}, v{16+i}")
    a("v_mul_f32 v40, s41, v40\nv_add_f32 v41, v16, v17")
    for i in range(2, 16): a(f"v_add_f32 v41, v41, v{16+i}")
    xrow("v_add_f32", 41, 42)
    for i in range(16): a(f"v_cvt_pk_bf16_f32 v{16+i}, v{16+i}, v{16+i}")
    a(f"""
    s_lshl_b32 s38, s28, 12
    v_lshl_add_u32 v7, v0, 4, s38
    s_lshl_b32 s38, s28, 3
    v_lshl_add_u32 v12, v4, 5, s38
    """)
    for i in range(4): a(f"ds_write_b128 v7, {v4(16+4*i)} offset:{L_P+1024*i}")
    a(f"""
    ds_write_b64 v12, v[40:41] offset:{L_STAT}
    s_lshr_b32 s38, s28, 1
    s_lshl_b32 s39, s38, 5
    v_mov_b32 v12, s39
    s_lshl_b32 s39, s28, 9
    v_lshl_add_u32 v13, v0, 3, s39
    ; byte index in o vector: B = 256w + 4l ; addr = (B/P)*16P + s*P + B%P
    s_lshl_b32 s39, s28, 8
    v_lshl_add_u32 v7, v0, 2, s39
    v_lshrrev_b32 v14, {lp}, v7
    v_lshlrev_b32 v14, {lp+4}, v14
    v_and_b32 v7, {P-1}, v7
    s_lshl_b32 s39, s42, 14
    s_lshl_b32 s43, s32, {lp}
    s_add_u32 s39, s39, s43
    s_add_u32 s39, s39, {OBUF}
    v_add3_u32 v14, v14, v7, s39
    s_lshl_b32 s39, s42, 7
    s_lshl_b32 s38, s38, 6
    s_add_u32 s39, s39, s38
    s_lshl_b32 s38, s32, 2
    s_add_u32 s39, s39, s38
    s_add_u32 s39, s39, {LSE}
    v_mov_b32 v15, s39
    v_and_b32 v7, 1, v3
    """)
    wphase("Q")
    a("s_waitcnt lgkmcnt(0)")
    TS(4)
    a("s_barrier ; B2")
    a(f"""
    ds_read_b128 v[16:19], v12 offset:{L_STAT}
    ds_read_b128 v[20:23], v12 offset:{L_STAT+16}
    s_waitcnt lgkmcnt(0)
    v_max3_f32 v24, v16, v18, v20
    v_max_f32 v24, v24, v22
    v_sub_f32 v16, v16, v24
    v_sub_f32 v18, v18, v24
    v_sub_f32 v20, v20, v24
    v_sub_f32 v22, v22, v24
    v_exp_f32 v16, v16
    v_exp_f32 v18, v18
    v_exp_f32 v20, v20
    v_exp_f32 v22, v22
    v_mul_f32 v25, v16, v17
    v_fmac_f32 v25, v18, v19
    v_fmac_f32 v25, v20, v21
    v_fmac_f32 v25, v22, v23
    v_rcp_f32 v26, v25
    v_log_f32 v25, v25
    v_mul_f32 v16, v16, v26
    v_mul_f32 v18, v18, v26
    v_mul_f32 v20, v20, v26
    v_mul_f32 v22, v22, v26
    v_add_f32 v25, v25, v24
    v_min_u32 v25, -2, v25
    s_bitcmp1_b32 s28, 0
    s_cbranch_scc1 L_nolse
    s_mov_b64 exec, 1
    s_cmp_eq_u32 s48, 4
    s_cbranch_scc1 L_lsefast
    global_store_dword v15, v25, s[26:27] sc1
    s_branch L_nolse
    L_lsefast:
    global_store_dword v15, v25, s[26:27]
    L_nolse:
    s_mov_b64 exec, -1
    s_cmp_ge_u32 s30, 14
    s_cbranch_scc1 L_knotwo
    """)
    def ooff(t):
        B = 64 * t
        return (B // P) * 16 * P + B % P
    early = all(c in "KVE" for c in wop)
    def trreads():
        for t in range(4):
            for nt in range(2):
                for hh in range(2):
                    a(f"ds_read_b64_tr_b16 {v2(64+8*t+4*nt+2*hh)}, v131 offset:{2048*t+256*hh+32*nt}")
    wo_w("M")
    a(f"""
    s_lshl_b32 s38, s29, 8
    s_lshr_b32 s39, s28, 1
    s_lshl_b32 s39, s39, 6
    s_add_u32 s38, s38, s39
    s_add_u32 s38, s38, {LSE}
    v_lshl_add_u32 v130, v3, 4, s38
    v_lshlrev_b32 v131, 9, v3
    v_lshrrev_b32 v4, 2, v2
    v_lshl_add_u32 v131, v4, 6, v131
    v_lshl_add_u32 v131, v5, 3, v131
    s_lshl_b32 s38, s28, 13
    s_add_u32 s38, s38, {L_W}
    v_add_u32 v131, s38, v131
    """)
    if early: trreads()
    a(f"""
    s_lshl_b32 s38, s29, 15
    s_add_u32 s38, s38, {OBUF}
    s_lshl_b32 s39, s28, 8
    v_lshl_add_u32 v4, v3, 4, s39
    v_lshrrev_b32 v128, {lp}, v4
    v_lshlrev_b32 v128, {lp+4}, v128
    v_and_b32 v4, {P-1}, v4
    v_add3_u32 v128, v128, v4, s38
    v_lshl_add_u32 v128, v2, {lp}, v128
    v_xor_b32 v129, 0x4000, v128
    v_lshlrev_b32 v132, 9, v7
    v_lshrrev_b32 v4, 1, v3
    v_lshl_add_u32 v132, v4, 8, v132
    v_lshrrev_b32 v4, 1, v2
    v_lshl_add_u32 v132, v4, 5, v132
    v_and_b32 v4, 1, v2
    v_lshl_add_u32 v132, v4, 2, v132
    s_lshl_b32 s39, s28, 3
    v_add_u32 v132, s39, v132
    v_lshlrev_b32 v133, 5, v0
    s_lshl_b32 s38, s29, 7
    s_lshl_b32 s39, s32, 10
    s_add_u32 s38, s38, s39
    s_add_u32 s38, s38, {HBUF}
    v_lshl_add_u32 v134, v0, 2, s38
    s_cmp_eq_u32 s29, 0
    s_cselect_b32 s38, -1, 0
    v_and_b32 v136, s38, v11
    v_and_b32 v137, s94, v136
    v_lshlrev_b32 v136, 16, v136
    """)
    oreduce("w")
    wo_w("L")
    lloads = [f"global_load_dwordx4 {v4(176+4*b)}, v130, s[26:27] offset:{128*b} sc1" for b in range(2)]
    def oloads(b): return [f"global_load_dwordx4 {v4(144+16*b+4*t)}, v{128+b}, s[26:27] offset:{ooff(t)} sc1" for t in range(4)]
    for l in lloads + oloads(1) + oloads(0): a(l)
    if not early:
        a("s_waitcnt vmcnt(10)")
        trreads()
    a(f"""
    s_mov_b32 s40, {TMO}
    s_waitcnt vmcnt(8)
    s_branch L_pl_chk
    L_pl:
    {"s_sleep %d" % slp1 if slp1 else ""}
    {lloads[0]}
    {lloads[1]}
    s_sub_u32 s40, s40, 1
    s_cbranch_scc1 L_pl_done
    s_waitcnt vmcnt(0)
    L_pl_chk:
    v_max3_u32 v4, v176, v177, v178
    v_max3_u32 v4, v4, v179, v180
    v_max3_u32 v4, v4, v181, v182
    v_max_u32 v4, v4, v183
    v_cmp_eq_u32 vcc, -1, v4
    s_cbranch_vccnz L_pl
    L_pl_done:
    """)
    TS(9)
    for op, pre in (("v_max_f32", lambda b, e: [f"v_max3_f32 v{20+2*b}, v{e}, v{e+1}, v{e+2}", f"v_max_f32 v{20+2*b}, v{20+2*b}, v{e+3}"]),
                    ("v_add_f32", lambda b, e: [f"v_sub_f32 v{e+r}, v{e+r}, v{20+2*b}" for r in range(4)] + [f"v_exp_f32 v{e+r}, v{e+r}" for r in range(4)] +
                                               [f"v_add_f32 v{20+2*b}, v{e}, v{e+1}", f"v_add_f32 v{21+2*b}, v{e+2}, v{e+3}", f"v_add_f32 v{20+2*b}, v{20+2*b}, v{21+2*b}"])):
        for b in range(2):
            for x in pre(b, 176+4*b): a(x)
        for nm in ("16", "32"):
            a(f"""v_mov_b32 v21, v20
            v_mov_b32 v23, v22
            s_nop 0
            v_permlane{nm}_swap_b32 v20, v21
            v_permlane{nm}_swap_b32 v22, v23
            {op} v20, v20, v21
            {op} v22, v22, v23""")
    a("v_rcp_f32 v20, v20\nv_rcp_f32 v22, v22")
    for b in range(2):
        for r in range(4): a(f"v_mul_f32 v{176+4*b+r}, v{176+4*b+r}, v{20+2*b}")
    def chk(b, dst):
        r = 144 + 16 * b
        a(f"v_max3_u32 v4, v{r}, v{r+1}, v{r+2}")
        for i in range(3, 15, 2): a(f"v_max3_u32 v4, v4, v{r+i}, v{r+i+1}")
        a(f"v_max_u32 v4, v4, v{r+15}\nv_cmp_eq_u32 {dst}, -1, v4")
    def wo_mm(b):
        o = 144 + 16 * b; e = 176 + 4 * b; D = 32 + 8 * b
        for t in range(4):
            for nt in range(2): mfma(D+4*nt, o+4*t, 64+8*t+4*nt, t == 0)
    def wo_fin(b):
        e = 176 + 4 * b; D = 32 + 8 * b
        a(f"""
        v_mul_f32 v{24+2*b}, v{D}, v{e}
        v_mul_f32 v{25+2*b}, v{D+4}, v{e}
        v_fmac_f32 v{24+2*b}, v{D+1}, v{e+1}
        v_fmac_f32 v{25+2*b}, v{D+5}, v{e+1}
        v_fmac_f32 v{24+2*b}, v{D+2}, v{e+2}
        v_fmac_f32 v{25+2*b}, v{D+6}, v{e+2}
        v_fmac_f32 v{24+2*b}, v{D+3}, v{e+3}
        v_fmac_f32 v{25+2*b}, v{D+7}, v{e+3}
        s_nop 1
        v_permlane32_swap_b32 v{24+2*b}, v{25+2*b}
        v_add_f32 v{24+2*b}, v{24+2*b}, v{25+2*b}
        """)
    a(f"""
    s_waitcnt lgkmcnt(0)
    L_pb_chk:
    s_waitcnt vmcnt(0)
    """)
    chk(0, "s[84:85]"); chk(1, "vcc")
    a(f"""
    s_cbranch_vccz L_b1done
    s_cmp_eq_u64 s[84:85], 0
    s_cbranch_scc1 L_b0done
    s_mov_b64 exec, vcc
    """)
    for l in oloads(1): a(l)
    a("s_mov_b64 exec, s[84:85]")
    for l in oloads(0): a(l)
    a(f"""
    s_mov_b64 exec, -1
    s_sub_u32 s40, s40, 1
    s_cbranch_scc0 L_pb_chk
    L_b0done:
    s_mov_b64 exec, vcc
    """)
    for l in oloads(1): a(l)
    a("s_mov_b64 exec, -1")
    wo_mm(0); a("s_nop 6"); wo_fin(0)
    poll("L_po1", oloads(1), range(160, 176), 4, first_issued=True)
    TS(7)
    wo_mm(1); a("s_nop 6"); wo_fin(1)
    a(f"""
    s_branch L_wojoin
    L_b1done:
    s_cmp_eq_u64 s[84:85], 0
    s_cbranch_scc1 L_bothdone
    s_mov_b64 exec, s[84:85]
    """)
    for l in oloads(0): a(l)
    a("s_mov_b64 exec, -1")
    wo_mm(1); a("s_nop 6"); wo_fin(1)
    poll("L_po0", oloads(0), range(144, 160), 4, first_issued=True)
    TS(7)
    wo_mm(0); a("s_nop 6"); wo_fin(0)
    a("s_branch L_wojoin\nL_bothdone:")
    TS(7)
    wo_mm(0); wo_mm(1); wo_fin(0); wo_fin(1)
    a("L_wojoin:")
    a(f"""
    s_cmp_lg_u32 s28, 0
    s_nop 0
    v_permlane16_swap_b32 v24, v26
    v_add_f32 v24, v24, v26
    ds_write_b32 v132, v24 offset:{L_RED}
    s_mov_b32 exec_hi, 0
    s_waitcnt lgkmcnt(0)
    s_barrier ; B4
    s_cbranch_scc1 L_end2
    ds_read_b128 v[16:19], v133 offset:{L_RED}
    ds_read_b128 v[20:23], v133 offset:{L_RED+16}
    s_waitcnt lgkmcnt(0)
    v_pk_add_f32 v[16:17], v[16:17], v[18:19]
    v_pk_add_f32 v[20:21], v[20:21], v[22:23]
    v_pk_add_f32 v[16:17], v[16:17], v[136:137]
    v_pk_add_f32 v[16:17], v[16:17], v[20:21]
    v_cvt_pk_bf16_f32 v16, v16, v17
    v_min_u32 v16, -2, v16
    global_store_dword v134, v16, s[26:27] sc1
    """)
    TS(8)
    a("L_end2:")
    END()
    oslow("w")
    a(f"""
    L_knotwo:
    s_cmp_ge_u32 s32, 14
    s_cbranch_scc1 L_kfinal
    """)
    fearly = all(c in "E" for c in fp)
    ffn_w("M")
    a(f"""
    s_mul_i32 s39, s28, 3584
    v_lshlrev_b32 v6, 8, v3
    v_lshl_add_u32 v6, v2, 3, v6
    s_add_u32 s38, s39, {L_G}
    v_add_u32 v118, s38, v6
    v_lshlrev_b32 v8, 8, v7
    v_lshl_add_u32 v8, v2, 3, v8
    v_add_u32 v8, s38, v8
    s_lshl_b32 s38, s28, 3
    v_lshl_add_u32 v40, v2, 5, s38
    v_lshlrev_b32 v41, 5, v2
    s_mul_i32 s38, s28, 112
    v_lshl_add_u32 v9, v3, 3, s38
    v_lshl_add_u32 v10, v7, 3, s38
    v_lshlrev_b32 v11, 6, v2
    v_add_u32 v11, {HBUF}, v11
    v_lshrrev_b32 v4, 5, v9
    v_and_b32 v9, 31, v9
    v_lshl_add_u32 v9, v9, 1, v11
    v_lshl_add_u32 v9, v4, 10, v9
    v_lshrrev_b32 v4, 5, v10
    v_and_b32 v10, 31, v10
    v_lshl_add_u32 v10, v10, 1, v11
    v_lshl_add_u32 v10, v4, 10, v10
    """)
    for r in range(8): a(f"v_mov_b32 v{96+r}, {ONES if r == 0 else 'v96'}")
    oreduce("f")
    ffn_w("L")
    diag_masks(12)
    a(f"""
    s_lshl_b32 s38, s28, 8
    v_lshl_add_u32 v11, v0, 2, s38
    v_lshrrev_b32 v42, 3, v2
    v_lshlrev_b32 v42, 7, v42
    v_lshl_add_u32 v117, v3, 4, v42
    v_lshrrev_b32 v4, 1, v3
    v_mul_u32_u24 v4, 14, v4
    v_lshrrev_b32 v42, 2, v2
    v_add_u32 v4, v4, v42
    v_mul_u32_u24 v4, 7168, v4
    v_lshl_add_u32 v4, v5, 4, v4
    s_and_b32 s46, s46, 0xffff
    s_mul_i32 s38, s28, {4*7168}
    s_lshl_b32 s41, s45, 6
    s_add_u32 s38, s38, s41
    s_add_u32 s38, s38, {PBUF}
    v_add_u32 v116, s38, v4
    s_waitcnt vmcnt(0)
    """)
    TS(5)
    for m in range(2):
        for t in range(4):
            for hh in range(2):
                a(f"ds_read_b64_tr_b16 {v2(64+16*m+4*t+2*hh)}, v{118 if t<3 else 8} offset:{14336*m+1024*t+128*hh}")
    a("s_waitcnt lgkmcnt(0)\ns_mov_b32 exec_lo, 0")
    for r in range(4): a(f"v_mov_b32 v{76+r}, 0\nv_mov_b32 v{92+r}, 0\nv_mov_b32 v{100+r}, 0")
    a("s_mov_b32 exec_lo, -1\ns_nop 0")
    for t in range(4):
        for m in range(2): mfma(104+4*m, 96, 64+16*m+4*t, t == 0)
    a(f"""
    s_nop 6
    v_mul_f32 v104, {hex(f2u(-1/448))}, v104
    v_mul_f32 v105, {hex(f2u(-1/448))}, v108
    ds_write_b64 v40, v[104:105] offset:{L_CS}
    s_waitcnt lgkmcnt(0)
    s_barrier ; B4
    ds_read_b128 v[104:107], v41 offset:{L_CS}
    ds_read_b128 v[108:111], v41 offset:{L_CS+16}
    s_waitcnt lgkmcnt(0)
    v_pk_add_f32 v[104:105], v[104:105], v[106:107]
    v_pk_add_f32 v[108:109], v[108:109], v[110:111]
    v_pk_add_f32 v[44:45], v[104:105], v[108:109]
    """)
    TS(7)
    poll("L_ph", [f"global_load_dwordx4 {v4(16+4*t)}, v9, s[26:27] offset:{1024*t} sc1" for t in range(3)] +
                 [f"global_load_dwordx4 v[28:31], v10, s[26:27] offset:3072 sc1"], range(16, 32), 4, slp=slp2)
    TS(8)
    for t in range(4): mfma(112, 16+4*t, 96 if t < 3 else 100, t == 0)
    for t in range(4): mfma(104, 16+4*t, 64+4*t, t == 0)
    for t in range(4): mfma(108, 16+4*t, 80+4*t, t == 0)
    a(f"""
    v_pk_add_f32 v[112:113], v[112:113], v[114:115]
    s_nop 2
    v_pk_add_f32 v[104:105], v[104:105], v[106:107]
    v_pk_fma_f32 v[104:105], v[112:113], v[44:45], v[104:105] op_sel_hi:[1,0,1]
    s_nop 1
    v_pk_add_f32 v[108:109], v[108:109], v[110:111]
    v_pk_fma_f32 v[108:109], v[112:113], v[44:45], v[108:109] op_sel:[0,1,0] op_sel_hi:[1,1,1]
    v_permlane32_swap_b32 v104, v105
    v_add_f32 v104, v104, v105
    v_permlane32_swap_b32 v108, v109
    v_add_f32 v108, v108, v109
    s_nop 1
    v_permlane16_swap_b32 v104, v108
    v_add_f32 v104, v104, v108
    ds_write_b32 v11, v104 offset:{L_RED}
    s_waitcnt lgkmcnt(0)
    s_barrier ; B5
    """)
    for w in range(4):
        for m in range(2): a(f"ds_read_b128 {v4(16+8*w+4*m)}, v117 offset:{L_RED+256*w+64*m}")
    a("s_waitcnt lgkmcnt(4)")
    for i in range(4): a(f"v_pk_add_f32 {v2(16+2*i)}, {v2(16+2*i)}, {v2(24+2*i)}")
    a("s_waitcnt lgkmcnt(0)")
    for i in range(4): a(f"v_pk_add_f32 {v2(32+2*i)}, {v2(32+2*i)}, {v2(40+2*i)}")
    for i in range(4): a(f"v_pk_add_f32 {v2(16+2*i)}, {v2(16+2*i)}, {v2(32+2*i)}")
    a("v_pk_mul_f32 v[16:17], v[16:17], v[20:21]\nv_pk_mul_f32 v[18:19], v[18:19], v[22:23]")
    for i in range(4): a(f"v_cvt_pk_bf16_f32 v{16+i}, v{16+i}, v{16+i}")
    for i in range(4):
        for r in range(4): a(f"v_and_b32 v{64+4*i+r}, v{16+i}, v{12+r}")
        if i: mfma(104, 64+4*(i-1), 48+4*(i-1), i == 1)
    a("s_nop 0")
    mfma(104, 76, 60, False)
    a(f"""
    s_nop 7
    v_cvt_pk_bf16_f32 v104, v104, v105
    v_cvt_pk_bf16_f32 v105, v106, v107
    v_min_u32 v104, -2, v104
    v_min_u32 v105, -2, v105
    s_nop 0
    v_permlane16_swap_b32 v104, v106
    v_permlane16_swap_b32 v105, v107
    s_mov_b32 exec_lo, s46
    s_mov_b32 exec_hi, s46
    global_store_dwordx4 v116, v[104:107], s[26:27] sc1
    """)
    TS(9)
    END()
    oslow("f")
    a("L_kfinal:")
    oreduce("z")
    a(f"""
    s_cmp_eq_u32 s29, 7
    s_cbranch_scc1 L_end2
    """)
    diag_masks(40)
    a(f"""
    v_lshrrev_b32 v6, 3, v2
    v_cmp_eq_u32 vcc, v6, v7
    v_mov_b32 v6, {ONES}
    v_and_b32 v44, v40, v6
    v_and_b32 v45, v41, v6
    v_and_b32 v46, v42, v6
    v_and_b32 v47, v43, v6
    v_cndmask_b32 v40, 0, v44, vcc
    v_cndmask_b32 v41, 0, v45, vcc
    v_cndmask_b32 v42, 0, v46, vcc
    v_cndmask_b32 v43, 0, v47, vcc
    v_lshrrev_b32 v9, 2, v2
    v_lshlrev_b32 v9, 10, v9
    v_lshl_add_u32 v9, v3, 6, v9
    v_lshl_add_u32 v9, v5, 4, v9
    s_lshl_b32 s38, s28, 12
    s_add_u32 s38, s38, {HBUF}
    v_add_u32 v9, s38, v9
    v_lshrrev_b32 v10, 1, v3
    v_mul_u32_u24 v10, 896, v10
    v_lshl_add_u32 v10, v2, 4, v10
    v_lshl_add_u32 v10, v7, 3, v10
    s_lshl_b32 s38, s28, 8
    v_add_u32 v10, s38, v10
    s_lshl_b32 s38, s31, 1
    s_add_u32 s38, s38, s32
    s_sub_u32 s38, s38, 14
    s_lshl_b32 s44, s29, 2
    s_add_u32 s44, s44, s38
    """)
    poll("L_ph2", [f"global_load_dwordx4 {v4(16+4*t)}, v9, s[26:27] offset:{256*t} sc1" for t in range(4)], range(16, 32), 4,
         mask=("s46", "s46"), slp=slp2f)
    TS(7)
    for t in range(4): mfma(48, 40, 16+4*t, t == 0)
    a(f"""
    s_mov_b32 exec_lo, s46
    s_mov_b32 exec_hi, s46
    s_nop 5
    v_cvt_pk_bf16_f32 v48, v48, v49
    v_cvt_pk_bf16_f32 v49, v50, v51
    ds_write_b64 v10, v[48:49] offset:{L_XN}
    s_mov_b64 exec, -1
    s_waitcnt lgkmcnt(0)
    s_barrier ; B4
    s_cmp_lg_u32 s28, 0
    s_cbranch_scc1 L_end2
    v_and_b32 v4, 31, v0
    v_cmp_gt_u32 s[36:37], 28, v4
    s_cmp_ge_u32 s44, 14
    s_cselect_b32 s38, 896, 0
    v_lshl_add_u32 v12, v4, 5, s38
    """)
    for i in range(8): a(f"v_mov_b32 v{16+i}, 0")
    a(f"""
    v_lshlrev_b32 v13, 4, v5
    v_lshl_add_u32 v13, v7, 3, v13
    s_lshl_b32 s38, s44, 6
    v_add_u32 v13, s38, v13
    ds_read_b64 v[60:61], v13 offset:{L_XN}
    s_mov_b64 exec, s[36:37]
    ds_read_b128 v[16:19], v12 offset:{L_XN}
    ds_read_b128 v[20:23], v12 offset:{L_XN+16}
    s_mov_b64 exec, -1
    s_mul_i32 s38, s44, 7168
    s_add_u32 s38, s38, {PBUF+4096}
    v_lshl_add_u32 v9, v0, 4, s38
    v_mov_b32 v15, 0
    v_mov_b32 v14, s33
    s_waitcnt lgkmcnt(0)
    """)
    ln_stats(16, 64, 48, 50, 51)
    a(f"""
    v_rcp_f32 v50, v50
    v_and_b32 v63, s94, v61
    v_lshlrev_b32 v62, 16, v61
    v_and_b32 v61, s94, v60
    v_lshlrev_b32 v60, 16, v60
    v_mul_f32 v50, v50, v50
    """)
    TS(8)
    if d3: a(f"s_sleep {d3}")
    poll("L_pp", [f"global_load_dwordx4 {v4(64+4*t)}, v9, s[26:27] offset:{1024*t-4096} sc1" for t in range(7)], range(64, 92), 4, slp=slp3)
    TS(5)
    for t in range(7): mfma(16, 44, 64+4*t, t == 0)
    a("s_cmp_lg_u32 s44, 0\ns_nop 6")
    for n in (4, 8):
        for r in range(4): a(f"v_add_f32_dpp v{16+r}, v{16+r}, v{16+r} row_ror:{n} row_mask:0xf bank_mask:0xf")
    a(f"""
    s_mov_b64 exec, 0x000f000f
    v_pk_mul_f32 v[16:17], v[16:17], v[50:51] op_sel_hi:[1,0]
    v_pk_mul_f32 v[18:19], v[18:19], v[50:51] op_sel_hi:[1,0]
    v_cvt_pk_bf16_f32 v16, v16, v17
    v_cvt_pk_bf16_f32 v18, v18, v19
    v_and_b32 v17, s94, v16
    v_lshlrev_b32 v16, 16, v16
    v_and_b32 v19, s94, v18
    v_lshlrev_b32 v18, 16, v18
    v_pk_add_f32 v[16:17], v[16:17], v[60:61]
    v_pk_add_f32 v[18:19], v[18:19], v[62:63]
    v_cvt_pk_bf16_f32 v16, v16, v17
    v_cvt_pk_bf16_f32 v17, v18, v19
    global_store_dwordx2 v13, v[16:17], s[22:23]
    s_cbranch_scc1 L_end3
    s_mov_b64 exec, 1
    global_store_dword v15, v14, s[26:27] offset:{EPOCH} sc1
    L_end3:
    """)
    TS(9)
    END()
    oslow("z")
    if ts and diag:
        wg, wv, i0, i1 = diag
        a(f"""
        L_tsout:
        s_memrealtime s[80:81]
        s_cmp_lg_u32 s2, {wg}
        s_cbranch_scc1 L_dend
        s_cmp_lg_u32 s28, {wv}
        s_cbranch_scc1 L_dend
        s_waitcnt lgkmcnt(0)
        s_sub_u32 s38, s{60+2*i1}, s{60+2*i0}
        s_min_u32 s38, s38, 5000
        s_add_u32 s38, s38, 6000
        L_dspin:
        s_memrealtime s[82:83]
        s_waitcnt lgkmcnt(0)
        s_sub_u32 s39, s82, s60
        s_cmp_lt_u32 s39, s38
        s_cbranch_scc1 L_dspin
        L_dend:
        s_endpgm
        """)
    elif ts:
        a(f"""
        L_tsout:
        s_memrealtime s[80:81]
        s_mov_b64 exec, 1
        s_lshl_b32 s38, s2, 3
        s_add_u32 s38, s38, s28
        s_lshl_b32 s38, s38, 6
        s_add_u32 s38, s38, {TSBUF}
        v_mov_b32 v4, s38
        s_mov_b32 s82, s48
        s_waitcnt lgkmcnt(0)
        """)
        for i in range(12): a(f"v_mov_b32 v{16+i}, s{60+2*i}")
        for i in range(3): a(f"global_store_dwordx4 v4, {v4(16+4*i)}, s[26:27] offset:{16*i}")
        a("s_endpgm")
    if skip:
        def drop(t):
            if "q" in skip and "s[10:11]" in t and t.startswith("global_load"): return True
            if "c" in skip and t.startswith("global_store_dwordx4 v13, v[24:27]"): return True
            if "d" in skip and t.startswith("global_load") and "s[20:21]" in t: return True
            if "o" in skip and t.startswith("global_load_lds") and "s[12:13]" in t and " v9," not in t: return True
            if "f" in skip and t.startswith("global_load_lds") and ("s[16:17]" in t or "s[18:19]" in t): return True
            if "p" in skip and t.startswith("global_store") and ("v4, v[32:35]" in t or "v7, v36" in t): return True
            return False
        a.items = [(k, "s_nop 0" if drop(t) else t, n) for k, t, n in a.items]
    sz0 = 0
    for (k, t, n), in zip(a.items):
        pass
    if hop:
        nb, size = insert_pads(a, lambda n, nb: f"Lpad{n+3}" if n + 3 < nb else "L_back")
    errs = check_hazards(a.items)
    for e in errs: print(e, file=sys.stderr)
    hdr = open("cdna_kernels/" + KNAME[:-7] + ".s.ref").read().split("; Override")[0]
    return f"""{hdr}; @launch grid=(256,1,1) block=(512,1,1) lds={LDS_BYTES}
.amdgcn_target "amdgcn-amd-amdhsa--gfx950"
.text
.globl {KNAME}
.p2align 10
.fill 64, 4, 0xbf810000
.p2align 8
.type {KNAME},@function
{KNAME}:
{a.text()}
.section .rodata,"a"
.p2align 6
.amdhsa_kernel {KNAME}
  .amdhsa_next_free_vgpr 256
  .amdhsa_next_free_sgpr 96
  .amdhsa_accum_offset 256
  .amdhsa_group_segment_fixed_size 0
  .amdhsa_kernarg_size 96
  .amdhsa_user_sgpr_count 2
  .amdhsa_user_sgpr_kernarg_segment_ptr 1
  .amdhsa_system_sgpr_workgroup_id_x 1
  .amdhsa_float_denorm_mode_32 3
.end_amdhsa_kernel
"""

if __name__ == "__main__":
    kw = {}
    out = sys.argv[1]
    for x in sys.argv[2:]:
        k, v = x.split("=")
        kw[k] = eval(v) if v[:1].isdigit() or v[:1] == "(" or v in ("True", "False") else v.replace("+", " ")
    open(out, "w").write(gen(**kw))
```

```python
import sys, struct
from alib import *

def f2u(x): return struct.unpack("<I", struct.pack("<f", x))[0]
LOG2E = 1.4426950408889634
ONES = "0x3f803f80"

EPOCH, XCC1, XCC2, DONE, GRDY = 0, 0x400, 0x800, 0xC00, 0x1000
OBUF, LSE, DELTA = 0x20000, 0x60000, 0x48000
HBUF, PBUF = 0xB0000, 0xB4000
QBUF = 0x140000
TSBUF = 0x100000
L_XN, L_STAT, L_FLAG, L_RED, L_CS, L_Q = 0, 0x700, 0x780, 0x800, 0x1000, 0x1400
L_P, L_ORED, L_XD, L_W = 0x2000, 0x6000, 0x8000, 0xC000
L_G, L_U = L_W, L_W + 14336
L_DUMMY = 0x9000
LDS_BYTES = 0x14800
TMO = 1 << 17

def gen(ts=0, qfl="nt", kvfl="nt", wfl="", ffl="", dfl="nt", hop=True, opiece=32, fast=True, win=6, winb=6, bsel="KV", tlb=0, pbar=1, krot=1, slots=(),
        wop="MM", worot=1, fp="LLLL", frot=1, wdp="M", slp1=1, slp2=0, slp2f=0, slp3=0, slpthr=16, d3=10, diag=None, skip="", w0=0, b1w=99, esc=24, pclr="Q", forceesc=0, remap=1, tgu="X", d2=0, wb=""):
    a = Asm()
    P = opiece; lp = P.bit_length() - 1
    def TS(i):
        if ts in (1, 3) or (ts and i == 0): a(f"s_memrealtime s[{60+2*i}:{61+2*i}]")
    def END():
        a("s_branch L_tsout" if ts else "s_endpgm")
    def v4(r): return f"v[{r}:{r+3}]"
    def v2(r): return f"v[{r}:{r+1}]"
    def mfma(d, A, B, first): a(f"v_mfma_f32_16x16x32_bf16 {v4(d)}, {v4(A)}, {v4(B)}, {'0' if first else v4(d)}")
    def xrow(op, v, t, sixteen=True, thirty2=True):
        for name, on in (("16", sixteen), ("32", thirty2)):
            if on:
                a(f"v_mov_b32 v{t}, v{v}\ns_nop 1\nv_permlane{name}_swap_b32 v{v}, v{t}\n{op} v{v}, v{v}, v{t}")
    def inrow_add(v):
        for n in (8, 4, 2, 1):
            a(f"s_nop 1\nv_add_f32_dpp v{v}, v{v}, v{v} row_ror:{n} row_mask:0xf bank_mask:0xf")
    def rbf(v):
        a(f"v_cvt_pk_bf16_f32 v{v}, v{v}, v{v}\nv_and_b32 v{v}, s94, v{v}")
    def ln_stats(raw, f, m, d, t):
        for i in range(8):
            a(f"v_lshlrev_b32 v{f+2*i}, 16, v{raw+i}\nv_and_b32 v{f+2*i+1}, s94, v{raw+i}")
        a(f"v_add_f32 v{m}, v{f}, v{f+1}")
        for i in range(2, 16): a(f"v_add_f32 v{m}, v{m}, v{f+i}")
        inrow_add(m); xrow("v_add_f32", m, t, True, False)
        a(f"v_mul_f32 v{m}, {hex(f2u(1/448))}, v{m}")
        a(f"v_sub_f32 v{t}, v{f}, v{m}\nv_mul_f32 v{d}, v{t}, v{t}")
        for i in range(1, 16): a(f"v_sub_f32 v{t}, v{f+i}, v{m}\nv_fmac_f32 v{d}, v{t}, v{t}")
        a(f"v_cndmask_b32 v{d}, 0, v{d}, s[36:37]")
        inrow_add(d); xrow("v_add_f32", d, t, True, False)
        a(f"v_mul_f32 v{d}, {hex(f2u(1/448))}, v{d}")
        rbf(d)
        a(f"v_add_f32 v{d}, {hex(f2u(1e-5))}, v{d}")
        rbf(d)
        a(f"v_sqrt_f32 v{d}, v{d}")
        rbf(m)
        rbf(d)
    def diag_masks(base, t0=4, t1=6):
        a(f"""v_and_b32 v{t0}, 1, v2
        v_lshlrev_b32 v{t0}, 4, v{t0}
        v_mov_b32 v{t1}, 0xffff
        v_lshlrev_b32 v{t1}, v{t0}, v{t1}
        v_bfe_u32 v{t0}, v2, 1, 2""")
        for r in range(4):
            a(f"v_cmp_eq_u32 vcc, {r}, v{t0}\ns_nop 1\nv_cndmask_b32 v{base+r}, 0, v{t1}, vcc")
    def poll(name, loads, regs_, t, mask=None, first_issued=False, slp=0):
        a(f"s_mov_b32 s40, {TMO}")
        if mask: a(f"s_mov_b32 exec_lo, {mask[0]}\ns_mov_b32 exec_hi, {mask[1]}")
        if first_issued: a(f"s_branch {name}_chk")
        elif slp: a(f"s_branch {name}_ld")
        a(f"{name}:")
        if slp:
            a(f"s_bcnt1_i32_b64 s47, exec\ns_cmp_le_u32 s47, {slpthr}\ns_cbranch_scc1 {name}_ld\ns_sleep {slp}\n{name}_ld:")
        for l in loads: a(l)
        a(f"s_sub_u32 s40, s40, 1\ns_cbranch_scc1 {name}_done")
        a(f"{name}_chk:\ns_waitcnt vmcnt(0)")
        r = list(regs_)
        a(f"v_max3_u32 v{t}, v{r[0]}, v{r[1]}, v{r[2]}"); r = r[3:]
        while len(r) >= 2:
            a(f"v_max3_u32 v{t}, v{t}, v{r[0]}, v{r[1]}"); r = r[2:]
        if r: a(f"v_max_u32 v{t}, v{t}, v{r[0]}")
        a(f"v_cmp_eq_u32 vcc, -1, v{t}")
        a(f"s_and_b64 exec, exec, vcc")
        a.nopad += 1
        a(f"s_cbranch_scc1 {name}\n{name}_done:\ns_mov_b64 exec, -1")
        a.nopad -= 1
    def after(n, upto):
        return (upto - 1 - n) + sum(1 for x in slots if n <= x < upto)
    def oreduce(tag):
        a("s_cmp_eq_u32 s49, 0\ns_waitcnt lgkmcnt(0)\ns_barrier ; B3")
        TS(6)
        for i in range(4): a(f"ds_read_b64 {v2(24+2*i)}, v13 offset:{L_ORED+2048*i}")
        a(f"""
        s_waitcnt lgkmcnt(0)
        v_pk_mul_f32 v[24:25], v[24:25], v[16:17] op_sel_hi:[1,0]
        v_pk_mul_f32 v[28:29], v[28:29], v[20:21] op_sel_hi:[1,0]
        v_pk_fma_f32 v[24:25], v[26:27], v[18:19], v[24:25] op_sel_hi:[1,0,1]
        v_pk_fma_f32 v[28:29], v[30:31], v[22:23], v[28:29] op_sel_hi:[1,0,1]
        v_pk_add_f32 v[24:25], v[24:25], v[28:29]
        v_cvt_pk_bf16_f32 v24, v24, v25
        v_min_u32 v24, -2, v24
        s_cbranch_scc0 L_oslow{tag}
        global_store_dword v14, v24, s[26:27]
        L_opub{tag}:
        """)
        if "t" in skip: END()
    def oslow(tag):
        a(f"""
        L_oslow{tag}:
        global_store_dword v14, v24, s[26:27] sc1
        s_lshl_b32 s38, s29, 7
        s_lshl_b32 s39, s30, 2
        s_add_u32 s39, s39, s38
        v_mov_b32 v4, s39
        v_mov_b32 v6, s33
        s_waitcnt vmcnt(0)
        s_barrier
        s_cmp_lg_u32 s28, 0
        s_cbranch_scc1 L_osl1{tag}
        global_store_dword v4, v6, s[26:27] offset:{DONE} sc1
        L_osl1{tag}:
        """)
        if tag == "w":
            a(f"""
            v_and_b32 v4, 31, v0
            v_lshl_add_u32 v4, v4, 2, s38
            s_mov_b32 s40, {TMO}
            L_osl2:
            global_load_dword v6, v4, s[26:27] offset:{DONE} sc1
            s_sub_u32 s40, s40, 1
            s_cbranch_scc1 L_opubw
            s_waitcnt vmcnt(0)
            v_cmp_ne_u32 vcc, s33, v6
            s_sleep 2
            s_cbranch_vccnz L_osl2
            """)
        a(f"s_branch L_opub{tag}")
    def grcheck(tag):
        a(f"""
        s_mov_b32 s40, {TMO}
        s_branch L_gr{tag}_chk
        L_gr{tag}:
        s_sleep 2
        global_load_dword v121, v120, s[26:27] sc1
        s_sub_u32 s40, s40, 1
        s_cbranch_scc1 L_gr{tag}_done
        L_gr{tag}_chk:
        s_waitcnt vmcnt(0)
        v_cmp_ne_u32 vcc, s33, v121
        s_cbranch_vccnz L_gr{tag}
        L_gr{tag}_done:
        """)
    def wdload():
        a("s_mov_b32 exec_lo, s46\ns_mov_b32 exec_hi, s46")
        for i in range(4): a(f"global_load_dwordx4 {v4(48+4*i)}, v43, s[20:21] offset:{896*i} {dfl}")
        a("s_mov_b64 exec, -1")

    def wo_w(ph):
        for hv in range(2):
            if wop[hv] == ph:
                a(f"s_mov_b32 m0, s{92+hv}\ns_nop 0")
                for i in range(4):
                    a(f"global_load_lds_dwordx4 v{44+hv}, s[12:13] offset:{1024*i} {wfl}")
                    if i < 3: a(f"v_add_u32 v{44+hv}, {16*896-1024}, v{44+hv}")
        if tgu == ph:
            a(f"""
            s_cmp_eq_u32 s29, 7
            s_cbranch_scc1 L_notg
            s_lshl_b32 s38, s32, 1
            s_and_b32 s39, s28, 1
            s_add_u32 s38, s38, s39
            s_mul_i32 s38, s38, {16*3584}
            s_lshl_b32 s39, s29, 9
            s_add_u32 s38, s38, s39
            v_lshrrev_b32 v4, 2, v0
            v_mul_u32_u24 v4, 3584, v4
            v_lshl_add_u32 v4, v5, 7, v4
            v_add_u32 v4, s38, v4
            s_cmp_ge_u32 s28, 2
            s_cselect_b64 s[54:55], s[18:19], s[16:17]
            global_load_dword v1, v4, s[54:55]
            L_notg:
            """)
    def ffn_w(ph):
        for k in range(4):
            if fp[k] == ph:
                a(f"s_mov_b32 exec_hi, s{88+k}")
                for lb, sb in ((L_G, "s[16:17]"), (L_U, "s[18:19]")):
                    a(f"s_add_u32 m0, s{84+k}, {lb}\ns_nop 0")
                    a(f"global_load_lds_dwordx4 v{44+k}, {sb} {ffl}")
                a("s_mov_b32 exec_hi, -1")
        if wdp == ph: wdload()
    def wphase(ph):
        if ph == pclr:
            a(f"""
            s_cmp_lg_u32 s95, 2
            s_cbranch_scc1 L_nopc
            s_mul_i32 s38, s44, 7168
            s_mul_i32 s39, s28, 1792
            s_add_u32 s38, s38, s39
            s_add_u32 s38, s38, {PBUF}
            v_lshl_add_u32 v8, v0, 4, s38
            v_mov_b32 v48, -1
            v_mov_b32 v49, -1
            v_mov_b32 v50, -1
            v_mov_b32 v51, -1
            global_store_dwordx4 v8, v[48:51], s[26:27] sc1
            s_mov_b32 exec_hi, 0xffff
            global_store_dwordx4 v8, v[48:51], s[26:27] offset:1024 sc1
            s_mov_b32 exec_hi, -1
            L_nopc:
            """)
        if ph in wop:
            a(f"s_cmp_ge_u32 s30, 14\ns_cbranch_scc1 L_nowo{ph}")
            wo_w(ph)
            a(f"L_nowo{ph}:")
        if ph in fp + wdp:
            a(f"s_cmp_lg_u32 s95, 1\ns_cbranch_scc1 L_noffn{ph}")
            ffn_w(ph)
            a(f"L_noffn{ph}:")

    TS(0)
    a(f"""
    s_cmp_ge_u32 s2, 256
    s_cbranch_scc1 L_exit
    s_load_dwordx16 s[4:19], s[0:1], 0
    s_load_dwordx8 s[20:27], s[0:1], 64
    v_lshrrev_b32 v1, 6, v0
    v_and_b32 v0, 63, v0
    v_readfirstlane_b32 s28, v1
    s_and_b32 s29, s2, 7
    s_lshr_b32 s30, s2, 3
    s_lshr_b32 s31, s2, 7
    s_and_b32 s32, s30, 15
    v_and_b32 v2, 15, v0
    v_lshrrev_b32 v3, 4, v0
    v_and_b32 v5, 3, v0
    s_mov_b32 s94, 0xffff0000
    s_cmp_eq_u32 s28, 4
    s_cbranch_scc1 L_qwave
    """)
    if hop:
        a.nopad += 1
        a(f"""
        s_cmp_lt_u32 s28, 4
        s_cbranch_scc1 L_setup
        s_mov_b64 exec, 0
        s_cmp_eq_u32 s28, 6
        s_cbranch_scc1 Lpad3
        s_cmp_eq_u32 s28, 7
        s_cbranch_scc1 Lpad4
        s_branch Lpad2
        L_back:
        s_mov_b64 exec, -1
        """)
        a.nopad -= 1
    a(f"""
    L_setup:
    s_lshl_b32 s34, s31, 3
    s_add_u32 s34, s34, s29
    s_lshl_b32 s34, s34, 9
    s_and_b32 s35, s28, 3
    s_lshl_b32 s38, s35, 4
    s_add_u32 s38, s38, s32
    s_add_u32 s34, s34, s38
    s_lshl_b32 s34, s34, 4
    s_lshl_b32 s38, s35, 2
    {"s_xor_b32 s38, s38, s32" if krot == 1 else "s_nop 0"}
    s_add_u32 s34, s34, s38
    s_lshl_b32 s34, s34, 11
    s_add_u32 s34, s34, {28672*512}
    s_movk_i32 s50, 0x800
    s_movk_i32 s51, 0x1800
    s_movk_i32 s52, 0x3800
    s_movk_i32 s53, 0x7800
    v_lshrrev_b32 v4, 2, v2
    v_lshlrev_b32 v4, 9, v4
    v_lshl_add_u32 v4, v3, 6, v4
    v_lshl_add_u32 v4, v5, 4, v4
    v_add_u32 v8, s34, v4
    s_lshl_b32 s38, s29, 2
    s_add_u32 s38, s38, s35
    s_mul_i32 s38, s38, {128*896}
    s_lshl_b32 s39, s32, 6
    s_add_u32 s38, s38, s39
    v_lshrrev_b32 v4, 2, v0
    v_mul_u32_u24 v4, 896, v4
    v_lshl_add_u32 v4, v5, 4, v4
    v_add_u32 v4, s38, v4
    s_and_b32 s38, s32, {worot}
    s_lshl_b32 s92, s38, 12
    s_mul_i32 s38, s38, {64*896}
    v_add_u32 v44, s38, v4
    s_sub_u32 s38, {64*896}, s38
    v_add_u32 v45, s38, v4
    s_lshl_b32 s38, s35, 13
    s_add_u32 s92, s92, s38
    s_add_u32 s92, s92, {L_W}
    s_xor_b32 s93, s92, 0x1000
    """)
    useslots = "K" in wop or "V" in wop
    if not useslots: slots = ()
    if useslots:
        a(f"""
        v_mov_b32 v9, 0x2000
        s_movk_i32 s58, -1024
        s_mov_b32 m0, {L_DUMMY}
        s_cmp_ge_u32 s30, 14
        s_cbranch_scc1 L_sdone
        """)
        for hv in range(2):
            if wop[hv] in "KV":
                a(f"""
                s_cmp_{"ge" if wop[hv] == "K" else "lt"}_u32 s28, 4
                s_cbranch_scc1 L_sno{hv}
                v_mov_b32 v9, v{44+hv}
                s_movk_i32 s58, {16*896-1024}
                s_mov_b32 m0, s{92+hv}
                L_sno{hv}:
                """)
    a(f"""
    L_sdone:
    s_cmp_lt_u32 s30, {14 if "K" in bsel else 0}
    s_cselect_b64 vcc, -1, 0
    s_cmp_ge_u32 s28, 4
    s_waitcnt lgkmcnt(0)
    s_cbranch_scc1 L_vpre
    s_mov_b64 s[54:55], s[6:7]
    s_load_dword s33, s[26:27], {EPOCH}
    """)
    TS(1)
    def stream(w_):
        for n in range(32):
            i, hf = n // 2, n % 2
            if w_ and w0 and n < 2 * w_ - w0 + 1 and n >= w0:
                if (n - w0) % 2 == 0: a(f"s_waitcnt vmcnt({n-1-(n-w0)//2})")
            elif w_ and n >= w_: a(f"s_waitcnt vmcnt({w_-1})")
            a(f"global_load_dwordx4 {v4(128+4*n)}, v8, s[54:55] offset:{hf*256} {kvfl}")
            if hf and i < 15:
                tz = ((i + 1) & -(i + 1)).bit_length() - 1
                a(f"v_xor_b32 v8, s{50+tz}, v8")
    a("L_stream:")
    if winb != win: a("s_cbranch_vccnz L_streamb")
    stream(win)
    a("""
    s_cbranch_scc0 L_kwave
    s_branch L_vpost
    L_exit:
    s_endpgm
    .p2align 10
    """)
    a(f"""
    L_qwave:
    s_setprio 3
    v_and_b32 v4, 31, v0
    v_cmp_gt_u32 s[36:37], 28, v4
    v_lshrrev_b32 v7, 5, v0
    v_mul_u32_u24 v7, 896, v7
    v_lshl_add_u32 v12, v4, 5, v7
    """)
    a("""s_lshr_b32 s41, s30, 2
    s_lshl_b32 s42, s29, 2
    s_and_b32 s38, s30, 3
    s_add_u32 s42, s42, s38""")
    a(f"""
    s_mul_i32 s38, s41, {56*8192}
    s_lshl_b32 s39, s42, 8
    s_add_u32 s38, s38, s39
    v_mul_u32_u24 v6, {14*8192}, v3
    v_lshl_add_u32 v6, v2, 4, v6
    v_add_u32 v112, s38, v6
    s_movk_i32 s38, 0x2000
    """)
    for i in range(1, 14): a(f"v_add_u32 v{112+i}, s38, v{111+i}")
    for i in range(4): a(f"v_mov_b32 v{24+i}, -1")
    a(f"""
    s_lshl_b32 s43, s29, 5
    s_add_u32 s43, s43, s30
    s_lshl_b32 s38, s43, 10
    s_add_u32 s38, s38, {OBUF}
    v_lshl_add_u32 v13, v0, 4, s38
    s_lshl_b32 s38, s43, 3
    s_add_u32 s38, s38, {LSE}
    v_mov_b32 v15, s38
    v_min_u32 v14, {896+27*32}, v12
    s_waitcnt lgkmcnt(0)
    s_load_dword s33, s[26:27], {EPOCH}
    global_load_dwordx4 v[16:19], v14, s[4:5]
    global_load_dwordx4 v[20:23], v14, s[4:5] offset:16
    """)
    for i in range(14): a(f"global_load_dwordx4 {v4(128+4*i)}, v{112+i}, s[10:11] {qfl}")
    a(f"""
    global_store_dwordx4 v13, v[24:27], s[26:27]
    s_mov_b64 exec, 1
    global_store_dwordx2 v15, v[24:25], s[26:27]
    s_getreg_b32 s39, hwreg(HW_REG_XCC_ID, 0, 4)
    s_lshl_b32 s38, s43, 2
    v_mov_b32 v52, s38
    s_waitcnt lgkmcnt(0)
    s_add_u32 s33, s33, 0x9e3779b0
    s_andn2_b32 s33, s33, 15
    s_or_b32 s39, s39, s33
    v_mov_b32 v53, s39
    global_store_dword v52, v53, s[26:27] offset:{XCC1 if not forceesc else XCC1 - 0x200 if False else XCC1}
    s_min_u32 s38, s30, 14
    s_lshl_b32 s38, s38, 3
    s_add_u32 s38, s38, s29
    s_lshl_b32 s38, s38, 7
    s_add_u32 s38, s38, {HBUF}
    s_mov_b64 exec, 0xff
    v_lshl_add_u32 v13, v0, 4, s38
    s_cmp_ge_u32 s30, 14
    s_cbranch_scc1 L_nohclr
    global_store_dwordx4 v13, v[24:27], s[26:27] sc1
    L_nohclr:
    s_mov_b64 exec, -1
    """)
    if winb != win:
        a("s_branch L_qcomp\nL_streamb:")
        stream(winb)
        a("s_cbranch_scc0 L_kwave\ns_branch L_vpost\nL_qcomp:")
    wmax = 0 if 0 in (win, winb) else max(win, winb)
    TS(1)
    diag_masks(8)
    a("s_waitcnt vmcnt(17)")
    for i in range(8): a(f"v_cndmask_b32 v{16+i}, 0, v{16+i}, s[36:37]")
    ln_stats(16, 32, 48, 49, 50)
    a("v_rcp_f32 v49, v49")
    for i in range(16): a(f"v_sub_f32 v{32+i}, v{32+i}, v48")
    for i in range(8):
        a(f"v_cvt_pk_bf16_f32 v{16+i}, v{32+2*i}, v{33+2*i}")
    for i in range(8):
        a(f"v_lshlrev_b32 v{32+2*i}, 16, v{16+i}\nv_and_b32 v{33+2*i}, s94, v{16+i}")
    for i in range(16): a(f"v_mul_f32 v{32+i}, v{32+i}, v49")
    for i in range(16): a(f"v_cvt_pk_bf16_f32 v{32+i}, v{32+i}, v{32+i}")
    a(f"""
    v_lshlrev_b32 v12, 1, v12
    s_mov_b64 exec, s[36:37]
    """)
    for i in range(4): a(f"ds_write_b128 v12, {v4(32+4*i)} offset:{L_XD+16*i}")
    a(f"""
    s_mov_b64 exec, -1
    v_lshrrev_b32 v4, 3, v2
    v_mul_u32_u24 v4, 1792, v4
    v_mul_u32_u24 v7, 56, v3
    s_mul_i32 s38, s41, 224
    v_add3_u32 v7, v7, v4, s38
    s_waitcnt lgkmcnt(0)
    """)
    for i in range(7): a(f"ds_read_b64 {v2(16+2*i)}, v7 offset:{L_XD+8*i}")
    a(f"""
    s_lshl_b32 s38, s29, 7
    v_and_b32 v6, 31, v0
    v_lshl_add_u32 v54, v6, 2, s38
    global_load_dword v55, v54, s[26:27] offset:{XCC1} sc1
    s_lshl_b32 s38, s29, 15
    s_lshl_b32 s41, s41, 11
    s_add_u32 s38, s38, s41
    s_and_b32 s41, s42, 3
    s_lshl_b32 s41, s41, 9
    s_add_u32 s38, s38, s41
    s_add_u32 s38, s38, {QBUF}
    v_lshrrev_b32 v4, 5, v0
    v_lshlrev_b32 v4, 14, v4
    v_lshl_add_u32 v4, v6, 4, v4
    v_add_u32 v4, s38, v4
    s_lshr_b32 s41, s33, 4
    v_mov_b32 v37, s41
    v_lshrrev_b32 v38, 7, v37
    v_lshrrev_b32 v39, 14, v37
    v_lshrrev_b32 v40, 21, v37
    s_movk_i32 s41, 0x7f
    s_waitcnt lgkmcnt(0)
    """)
    for i in range(14):
        for r in range(4): a(f"v_and_b32 v{192+4*i+r}, v{16+i}, v{8+r}")
    a("s_waitcnt vmcnt(1)")
    TS(2)
    for i in range(14): mfma(32, 192+4*i, 128+4*i, i == 0)
    a(f"""
    s_mov_b32 s40, 0
    s_waitcnt vmcnt(0)
    v_cmp_ne_u32 vcc, s39, v55
    s_nop 4
    """)
    for r in range(4): a(f"v_add_u32 v{32+r}, 64, v{32+r}")
    for r in range(4): a(f"v_bfi_b32 v{32+r}, s41, v{37+r}, v{32+r}")
    a(f"""
    v_mov_b32 v28, 0
    v_mov_b32 v29, 0
    {"s_cbranch_vccnz L_px" if fast and not forceesc else "s_branch L_px"}
    L_qfast:
    global_store_dwordx4 v4, v[32:35], s[26:27]
    L_qpub:
    ds_write_b32 v28, v29 offset:{L_FLAG}
    s_setprio 0
    """)
    TS(3)
    a(f"""
    s_branch L_setup
    L_px:
    s_sleep 2
    s_add_u32 s40, s40, 1
    s_cmp_lg_u32 s40, {esc}
    s_cbranch_scc1 L_px1
    s_mov_b64 exec, 1
    global_store_dword v52, v53, s[26:27] offset:{XCC2} sc1
    s_mov_b64 exec, -1
    L_px1:
    global_load_dword v55, v54, s[26:27] offset:{XCC1} sc1
    v_mov_b32 v56, 16
    s_cmp_lt_u32 s40, {esc}
    s_cbranch_scc1 L_px2
    global_load_dword v56, v54, s[26:27] offset:{XCC2} sc1
    s_waitcnt vmcnt(0)
    v_xor_b32 v56, s39, v56
    L_px2:
    s_waitcnt vmcnt(0)
    v_xor_b32 v55, s39, v55
    {"v_mov_b32 v55, 16" if forceesc else ""}
    v_min_u32 v55, v55, v56
    v_cmp_ne_u32 vcc, 0, v55
    {"s_cbranch_vccz L_qfast" if fast else "s_cbranch_vccz L_qslow"}
    v_add_u32 v55, -1, v55
    v_cmp_gt_u32 vcc, 15, v55
    s_cbranch_vccnz L_qslow
    s_cmp_lt_u32 s40, {TMO}
    s_cbranch_scc1 L_px
    L_qslow:
    global_store_dwordx4 v4, v[32:35], s[26:27] sc1
    s_mov_b64 exec, 1
    global_store_dword v52, v53, s[26:27] offset:{XCC2} sc1
    s_mov_b64 exec, -1
    v_mov_b32 v29, 0x100
    s_branch L_qpub
    """)
    a(f"""
    L_vpre:
    v_lshlrev_b32 v4, 9, v3
    v_lshl_add_u32 v4, v2, 4, v4
    v_add_u32 v8, s34, v4
    s_mov_b64 s[54:55], s[8:9]
    """)
    diag_masks(12)
    a(f"""
    s_lshl_b32 s38, s35, 12
    v_lshl_add_u32 v4, v0, 4, s38
    s_lshl_b32 s38, s35, 11
    v_lshrrev_b32 v7, 1, v3
    v_lshlrev_b32 v7, 10, v7
    v_lshl_add_u32 v7, v2, 5, v7
    v_and_b32 v6, 1, v3
    v_lshl_add_u32 v7, v6, 4, v7
    v_add_u32 v7, s38, v7
    s_cmp_lt_u32 s30, {14 if "V" in bsel else 0}
    s_cselect_b64 vcc, -1, 0
    s_cmp_ge_u32 s28, 4
    s_barrier ; B1
    s_branch L_stream
    L_vpost:
    """)
    if "V" in wop:
        last = max(slots)
        if not (win and last <= 31 - win - 1): a(f"s_waitcnt vmcnt({31-last})")
    TS(4)
    a("s_barrier ; B2")
    TS(5)
    for i in range(4): a(f"ds_read_b128 {v4(16+4*i)}, v4 offset:{L_P+1024*i}")
    a("s_waitcnt lgkmcnt(0)")
    for i in range(16):
        for r in range(4): a(f"v_and_b32 v{64+4*i+r}, v{16+i}, v{12+r}")
        if i:
            for hf in range(2):
                n = 2*(i-1)+hf
                if not wmax or n > 31 - wmax: a(f"s_waitcnt vmcnt({after(n, 32)})")
                mfma(32+4*hf, 64+4*(i-1), 128+4*n, i == 1)
    for n in (30, 31):
        a(f"s_waitcnt vmcnt({after(n, 32)})")
        mfma(32+4*(n%2), 64+60, 128+4*n, False)
    TS(6)
    a(f"""
    s_nop 5
    ds_write_b128 v7, v[32:35] offset:{L_ORED}
    s_nop 0
    ds_write_b128 v7, v[36:39] offset:{L_ORED+512}
    s_waitcnt lgkmcnt(0)
    s_barrier ; B3
    L_end:
    """)
    if ts == 3 or diag: END()
    else: a("s_endpgm")
    a("L_kwave:")
    if b1w < 64: a(f"s_waitcnt vmcnt({b1w})")
    TS(2)
    a(f"""
    s_barrier ; B1
    """)
    if remap: a("""
    s_lshl_b32 s45, s29, 4
    s_add_u32 s45, s45, s32
    s_lshl_b32 s44, s29, 1
    s_add_u32 s44, s44, s32
    s_cmp_eq_u32 s29, 7
    s_cbranch_scc1 L_r7
    s_sub_u32 s44, s44, 14
    s_sub_u32 s95, 2, s31
    s_branch L_rd
    L_r7:
    s_cmp_lt_u32 s32, 14
    s_cselect_b32 s95, 2, 3
    L_rd:
    s_cmp_lt_u32 s30, 14
    s_cselect_b32 s95, 0, s95
    """)
    else: a("""
    s_mul_i32 s45, s29, 14
    s_add_u32 s45, s45, s32
    s_lshl_b32 s38, s31, 1
    s_add_u32 s38, s38, s32
    s_sub_u32 s38, s38, 14
    s_lshl_b32 s44, s29, 2
    s_add_u32 s44, s44, s38
    s_cmp_eq_u32 s29, 7
    s_cselect_b32 s95, 3, 2
    s_cmp_lt_u32 s32, 14
    s_cselect_b32 s95, s31, s95
    """)
    a(f"""
    s_lshl_b32 s42, s29, 1
    s_add_u32 s42, s42, s31
    s_lshl_b32 s38, s42, 14
    s_lshl_b32 s41, s28, 9
    s_add_u32 s38, s38, s41
    s_add_u32 s38, s38, {QBUF+4096}
    v_lshrrev_b32 v7, 5, v0
    v_lshlrev_b32 v12, 13, v7
    v_and_b32 v13, 31, v0
    v_lshl_add_u32 v12, v13, 4, v12
    v_add_u32 v12, s38, v12
    v_lshrrev_b32 v4, 3, v2
    v_lshlrev_b32 v6, 9, v4
    v_lshl_add_u32 v6, v3, 6, v6
    v_lshl_add_u32 v6, v5, 4, v6
    v_mov_b32 v14, 0
    v_and_b32 v10, 1, v3
    v_mul_u32_u24 v10, 896, v10
    v_lshl_add_u32 v10, v2, 2, v10
    s_min_u32 s38, s32, 13
    s_lshl_b32 s38, s38, 6
    v_add_u32 v10, s38, v10
    s_cmp_ge_u32 s95, 2
    s_cselect_b64 s[54:55], s[22:23], s[4:5]
    global_load_dword v11, v10, s[54:55]
    s_mul_i32 s38, s45, {16*896}
    s_lshl_b32 s39, s28, 8
    s_add_u32 s38, s38, s39
    v_mul_u32_u24 v43, {4*896}, v3
    v_lshl_add_u32 v43, v2, 4, v43
    v_add_u32 v43, s38, v43
    s_cmp_eq_u32 s28, 3
    s_cselect_b32 s46, 0x00ff00ff, -1
    v_mov_b32 v46, 0
    v_mov_b32 v47, 0
    s_cmp_lt_u32 s30, 14
    s_cbranch_scc1 L_nofa
    s_lshl_b32 s38, s45, 5
    s_mul_i32 s39, s28, {112*3584}
    s_add_u32 s38, s38, s39
    v_lshrrev_b32 v9, 1, v0
    v_mul_u32_u24 v9, 3584, v9
    v_and_b32 v8, 1, v0
    v_lshl_add_u32 v9, v8, 4, v9
    v_add_u32 v9, s38, v9
    s_and_b32 s41, s45, {3 if frot else 0}
    s_mul_i32 s39, s28, 3584
    """)
    for k in range(4):
        a(f"""s_xor_b32 s38, s41, {k}
        s_cmp_eq_u32 s38, 3
        s_cselect_b32 s{88+k}, 0, -1
        s_lshl_b32 s{84+k}, s38, 10
        s_add_u32 s{84+k}, s{84+k}, s39
        s_mul_i32 s38, s38, {32*3584}
        v_add_u32 v{44+k}, s38, v9""")
    if tlb:
        a("""s_mov_b64 exec, 1
        global_load_dword v1, v14, s[16:17]
        global_load_dword v1, v14, s[18:19]
        global_load_dword v1, v14, s[20:21]
        s_mov_b64 exec, -1""")
    a("L_nofa:")
    wphase("E")
    a(f"""
    s_waitcnt lgkmcnt(0)
    s_add_u32 s33, s33, 0x9e3779b0
    s_andn2_b32 s33, s33, 15
    s_lshr_b32 s56, s33, 4
    s_lshr_b32 s57, s33, 11
    s_lshr_b32 s58, s33, 18
    s_lshr_b32 s59, s33, 25
    s_mov_b32 s40, {TMO}
    {"s_branch L_pq_done" if "g" in skip else ""}
    L_pq:
    """)
    for i in range(4): a(f"global_load_dwordx4 {v4(16+4*i)}, v12, s[26:27] offset:{2048*i-4096} sc1")
    a(f"""
    s_sub_u32 s40, s40, 1
    s_cbranch_scc1 L_pq_done
    s_waitcnt vmcnt(0)
    v_xor_b32 v38, s56, v16
    """)
    for i in range(1, 16): a(f"v_bitop3_b32 v38, v{16+i}, s{56+i%4}, v38 bitop3:0xbe")
    a(f"""
    v_and_b32 v38, 0x7f, v38
    v_cmp_ne_u32 vcc, 0, v38
    s_and_b64 exec, exec, vcc
    """)
    a.nopad += 1
    a("s_cbranch_scc1 L_pq\nL_pq_done:\ns_mov_b64 exec, -1")
    a.nopad -= 1
    a("s_movk_i32 s38, 0xff80\ns_waitcnt vmcnt(0)")
    for i in range(16): a(f"v_and_b32 v{16+i}, s38, v{16+i}")
    for i in range(4): a(f"v_pk_add_f32 {v2(16+2*i)}, {v2(16+2*i)}, {v2(24+2*i)}")
    a(f"""
    v_pk_add_f32 v[16:17], v[16:17], v[20:21]
    v_pk_add_f32 v[18:19], v[18:19], v[22:23]
    s_nop 1
    v_permlane32_swap_b32 v16, v18
    v_permlane32_swap_b32 v17, v19
    v_pk_add_f32 v[16:17], v[16:17], v[18:19]
    v_cvt_pk_bf16_f32 v16, v16, v17
    v_lshlrev_b32 v7, 2, v7
    v_lshl_add_u32 v7, v2, 4, v7
    v_and_b32 v13, 1, v3
    v_lshl_add_u32 v7, v13, 3, v7
    s_lshl_b32 s38, s28, 8
    v_add_u32 v7, s38, v7
    v_mov_b32 v13, 1
    ds_write_b32 v7, v16 offset:{L_Q}
    s_mov_b64 exec, 1
    ds_add_u32 v14, v13 offset:{L_FLAG}
    s_mov_b64 exec, -1
    L_qwait:
    ds_read_b32 v13, v14 offset:{L_FLAG}
    s_sub_u32 s40, s40, 1
    s_cbranch_scc1 L_qgot
    s_waitcnt lgkmcnt(0)
    v_readfirstlane_b32 s48, v13
    s_and_b32 s38, s48, 0xff
    s_cmp_eq_u32 s38, 4
    s_cbranch_scc1 L_qgot
    s_sleep 1
    s_branch L_qwait
    L_qgot:
    ds_read_b128 v[32:35], v6 offset:{L_Q}
    ds_read_b128 v[36:39], v6 offset:{L_Q+256}
    s_mov_b32 s41, {hex(f2u(LOG2E / 16))}
    s_cmp_eq_u32 s48, 4
    s_cselect_b32 s49, 0, {DELTA}
    s_lshl_b32 s38, s28, 5
    s_add_u32 s38, s38, s30
    s_cmp_lg_u32 s38, 31
    s_cbranch_scc1 L_nogr
    s_lshl_b32 s38, s29, 7
    s_add_u32 s38, s38, {GRDY}
    v_mov_b32 v12, s38
    v_mov_b32 v13, s33
    s_mov_b64 exec, 1
    global_store_dword v12, v13, s[26:27] sc1
    s_mov_b64 exec, -1
    L_nogr:
    s_waitcnt lgkmcnt(0)
    """)
    TS(3)
    for i in range(16):
        mfma(64+4*i, 128+8*i, 32, True); mfma(64+4*i, 132+8*i, 36, False)
    for r in range(4):
        for i in range(16):
            if r == 0: a(f"v_mov_b32_dpp v{16+i}, v{64+4*i} quad_perm:[0,0,0,0] row_mask:0xf bank_mask:0xf")
            else: a(f"v_add_f32_dpp v{16+i}, v{64+4*i+r}, v{16+i} quad_perm:[{r},{r},{r},{r}] row_mask:0xf bank_mask:0xf")
    for i in range(8): a(f"v_cvt_pk_bf16_f32 v{32+i}, v{16+2*i}, v{17+2*i}")
    for i in range(8): a(f"v_lshlrev_b32 v{16+2*i}, 16, v{32+i}\nv_and_b32 v{17+2*i}, s94, v{32+i}")
    a("v_max3_f32 v40, v16, v17, v18")
    for i in range(6): a(f"v_max3_f32 v40, v40, v{19+2*i}, v{20+2*i}")
    a("v_max_f32 v40, v40, v31")
    xrow("v_max_f32", 40, 42)
    for i in range(16): a(f"v_sub_f32 v{16+i}, v{16+i}, v40")
    for i in range(16): a(f"v_mul_f32 v{16+i}, s41, v{16+i}")
    for i in range(16): a(f"v_exp_f32 v{16+i}, v{16+i}")
    a("v_mul_f32 v40, s41, v40\nv_add_f32 v41, v16, v17")
    for i in range(2, 16): a(f"v_add_f32 v41, v41, v{16+i}")
    xrow("v_add_f32", 41, 42)
    for i in range(16): a(f"v_cvt_pk_bf16_f32 v{16+i}, v{16+i}, v{16+i}")
    a(f"""
    s_lshl_b32 s38, s28, 12
    v_lshl_add_u32 v7, v0, 4, s38
    s_lshl_b32 s38, s28, 3
    v_lshl_add_u32 v12, v4, 5, s38
    """)
    for i in range(4): a(f"ds_write_b128 v7, {v4(16+4*i)} offset:{L_P+1024*i}")
    a(f"""
    ds_write_b64 v12, v[40:41] offset:{L_STAT}
    s_lshr_b32 s38, s28, 1
    s_lshl_b32 s39, s38, 5
    v_mov_b32 v12, s39
    s_lshl_b32 s39, s28, 9
    v_lshl_add_u32 v13, v0, 3, s39
    ; byte index in o vector: B = 256w + 4l ; addr = (B/P)*16P + s*P + B%P
    s_lshl_b32 s39, s28, 8
    v_lshl_add_u32 v7, v0, 2, s39
    v_lshrrev_b32 v14, {lp}, v7
    v_lshlrev_b32 v14, {lp+4}, v14
    v_and_b32 v7, {P-1}, v7
    s_lshl_b32 s39, s42, 14
    s_lshl_b32 s43, s32, {lp}
    s_add_u32 s39, s39, s43
    s_add_u32 s39, s39, {OBUF}
    s_add_u32 s39, s39, s49
    v_add3_u32 v14, v14, v7, s39
    s_lshl_b32 s39, s42, 7
    s_lshl_b32 s38, s38, 6
    s_add_u32 s39, s39, s38
    s_lshl_b32 s38, s32, 2
    s_add_u32 s39, s39, s38
    s_add_u32 s39, s39, {LSE}
    s_add_u32 s39, s39, s49
    v_mov_b32 v15, s39
    v_and_b32 v7, 1, v3
    """)
    wphase("Q")
    a("s_waitcnt lgkmcnt(0)")
    TS(4)
    a("s_barrier ; B2")
    a(f"""
    ds_read_b128 v[16:19], v12 offset:{L_STAT}
    ds_read_b128 v[20:23], v12 offset:{L_STAT+16}
    s_waitcnt lgkmcnt(0)
    v_max3_f32 v24, v16, v18, v20
    v_max_f32 v24, v24, v22
    v_sub_f32 v16, v16, v24
    v_sub_f32 v18, v18, v24
    v_sub_f32 v20, v20, v24
    v_sub_f32 v22, v22, v24
    v_exp_f32 v16, v16
    v_exp_f32 v18, v18
    v_exp_f32 v20, v20
    v_exp_f32 v22, v22
    v_mul_f32 v25, v16, v17
    v_fmac_f32 v25, v18, v19
    v_fmac_f32 v25, v20, v21
    v_fmac_f32 v25, v22, v23
    v_rcp_f32 v26, v25
    v_log_f32 v25, v25
    v_mul_f32 v16, v16, v26
    v_mul_f32 v18, v18, v26
    v_mul_f32 v20, v20, v26
    v_mul_f32 v22, v22, v26
    v_add_f32 v25, v25, v24
    v_min_u32 v25, -2, v25
    s_bitcmp1_b32 s28, 0
    s_cbranch_scc1 L_nolse
    s_mov_b64 exec, 1
    s_cmp_eq_u32 s49, 0
    s_cbranch_scc1 L_lsefast
    global_store_dword v15, v25, s[26:27] sc1
    s_branch L_nolse
    L_lsefast:
    global_store_dword v15, v25, s[26:27]
    L_nolse:
    s_mov_b64 exec, -1
    s_cmp_ge_u32 s30, 14
    s_cbranch_scc1 L_knotwo
    """)
    def ooff(t):
        B = 64 * t
        return (B // P) * 16 * P + B % P
    early = all(c in "KVE" for c in wop)
    def trreads():
        for t in range(4):
            for nt in range(2):
                for hh in range(2):
                    a(f"ds_read_b64_tr_b16 {v2(64+8*t+4*nt+2*hh)}, v131 offset:{2048*t+256*hh+32*nt}")
    wo_w("M")
    a(f"""
    s_lshl_b32 s38, s29, 8
    s_lshr_b32 s39, s28, 1
    s_lshl_b32 s39, s39, 6
    s_add_u32 s38, s38, s39
    s_add_u32 s38, s38, {LSE}
    s_add_u32 s38, s38, s49
    v_lshl_add_u32 v130, v3, 4, s38
    v_lshlrev_b32 v131, 9, v3
    v_lshrrev_b32 v4, 2, v2
    v_lshl_add_u32 v131, v4, 6, v131
    v_lshl_add_u32 v131, v5, 3, v131
    s_lshl_b32 s38, s28, 13
    s_add_u32 s38, s38, {L_W}
    v_add_u32 v131, s38, v131
    """)
    if early: trreads()
    a(f"""
    s_lshl_b32 s38, s29, 15
    s_add_u32 s38, s38, {OBUF}
    s_add_u32 s38, s38, s49
    s_lshl_b32 s39, s28, 8
    v_lshl_add_u32 v4, v3, 4, s39
    v_lshrrev_b32 v128, {lp}, v4
    v_lshlrev_b32 v128, {lp+4}, v128
    v_and_b32 v4, {P-1}, v4
    v_add3_u32 v128, v128, v4, s38
    v_lshl_add_u32 v128, v2, {lp}, v128
    v_xor_b32 v129, 0x4000, v128
    v_lshlrev_b32 v132, 9, v7
    v_lshrrev_b32 v4, 1, v3
    v_lshl_add_u32 v132, v4, 8, v132
    v_lshrrev_b32 v4, 1, v2
    v_lshl_add_u32 v132, v4, 5, v132
    v_and_b32 v4, 1, v2
    v_lshl_add_u32 v132, v4, 2, v132
    s_lshl_b32 s39, s28, 3
    v_add_u32 v132, s39, v132
    v_lshlrev_b32 v133, 5, v0
    s_lshl_b32 s38, s29, 7
    s_lshl_b32 s39, s32, 10
    s_add_u32 s38, s38, s39
    s_add_u32 s38, s38, {HBUF}
    v_lshl_add_u32 v134, v0, 2, s38
    s_cmp_eq_u32 s29, 0
    s_cselect_b32 s38, -1, 0
    v_and_b32 v136, s38, v11
    v_and_b32 v137, s94, v136
    v_lshlrev_b32 v136, 16, v136
    """)
    oreduce("w")
    if pbar: a("s_barrier")
    wo_w("L")
    lloads = [f"global_load_dwordx4 {v4(176+4*b)}, v130, s[26:27] offset:{128*b} sc1" for b in range(2)]
    def oloads(b): return [f"global_load_dwordx4 {v4(144+16*b+4*t)}, v{128+b}, s[26:27] offset:{ooff(t)} sc1" for t in range(4)]
    for l in lloads + oloads(1) + oloads(0): a(l)
    if not early:
        a("s_waitcnt vmcnt(10)")
        trreads()
    a(f"""
    s_mov_b32 s40, {TMO}
    s_waitcnt vmcnt(8)
    s_branch L_pl_chk
    L_pl:
    {"s_sleep %d" % slp1 if slp1 else ""}
    {lloads[0]}
    {lloads[1]}
    s_sub_u32 s40, s40, 1
    s_cbranch_scc1 L_pl_done
    s_waitcnt vmcnt(0)
    L_pl_chk:
    v_max3_u32 v4, v176, v177, v178
    v_max3_u32 v4, v4, v179, v180
    v_max3_u32 v4, v4, v181, v182
    v_max_u32 v4, v4, v183
    v_cmp_eq_u32 vcc, -1, v4
    s_cbranch_vccnz L_pl
    L_pl_done:
    """)
    TS(9)
    for op, pre in (("v_max_f32", lambda b, e: [f"v_max3_f32 v{20+2*b}, v{e}, v{e+1}, v{e+2}", f"v_max_f32 v{20+2*b}, v{20+2*b}, v{e+3}"]),
                    ("v_add_f32", lambda b, e: [f"v_sub_f32 v{e+r}, v{e+r}, v{20+2*b}" for r in range(4)] + [f"v_exp_f32 v{e+r}, v{e+r}" for r in range(4)] +
                                               [f"v_add_f32 v{20+2*b}, v{e}, v{e+1}", f"v_add_f32 v{21+2*b}, v{e+2}, v{e+3}", f"v_add_f32 v{20+2*b}, v{20+2*b}, v{21+2*b}"])):
        for b in range(2):
            for x in pre(b, 176+4*b): a(x)
        for nm in ("16", "32"):
            a(f"""v_mov_b32 v21, v20
            v_mov_b32 v23, v22
            s_nop 0
            v_permlane{nm}_swap_b32 v20, v21
            v_permlane{nm}_swap_b32 v22, v23
            {op} v20, v20, v21
            {op} v22, v22, v23""")
    a("v_rcp_f32 v20, v20\nv_rcp_f32 v22, v22")
    for b in range(2):
        for r in range(4): a(f"v_mul_f32 v{176+4*b+r}, v{176+4*b+r}, v{20+2*b}")
    def chk(b, dst):
        r = 144 + 16 * b
        a(f"v_max3_u32 v4, v{r}, v{r+1}, v{r+2}")
        for i in range(3, 15, 2): a(f"v_max3_u32 v4, v4, v{r+i}, v{r+i+1}")
        a(f"v_max_u32 v4, v4, v{r+15}\nv_cmp_eq_u32 {dst}, -1, v4")
    def wo_mm(b):
        o = 144 + 16 * b; e = 176 + 4 * b; D = 32 + 8 * b
        for t in range(4):
            for nt in range(2): mfma(D+4*nt, o+4*t, 64+8*t+4*nt, t == 0)
    def wo_fin(b):
        e = 176 + 4 * b; D = 32 + 8 * b
        a(f"""
        v_mul_f32 v{24+2*b}, v{D}, v{e}
        v_mul_f32 v{25+2*b}, v{D+4}, v{e}
        v_fmac_f32 v{24+2*b}, v{D+1}, v{e+1}
        v_fmac_f32 v{25+2*b}, v{D+5}, v{e+1}
        v_fmac_f32 v{24+2*b}, v{D+2}, v{e+2}
        v_fmac_f32 v{25+2*b}, v{D+6}, v{e+2}
        v_fmac_f32 v{24+2*b}, v{D+3}, v{e+3}
        v_fmac_f32 v{25+2*b}, v{D+7}, v{e+3}
        s_nop 1
        v_permlane32_swap_b32 v{24+2*b}, v{25+2*b}
        v_add_f32 v{24+2*b}, v{24+2*b}, v{25+2*b}
        """)
    a(f"""
    s_waitcnt lgkmcnt(0)
    L_pb_chk:
    s_waitcnt vmcnt(0)
    """)
    chk(0, "s[84:85]"); chk(1, "vcc")
    a(f"""
    s_cbranch_vccz L_b1done
    s_cmp_eq_u64 s[84:85], 0
    s_cbranch_scc1 L_b0done
    s_mov_b64 exec, vcc
    """)
    for l in oloads(1): a(l)
    a("s_mov_b64 exec, s[84:85]")
    for l in oloads(0): a(l)
    a(f"""
    s_mov_b64 exec, -1
    s_sub_u32 s40, s40, 1
    s_cbranch_scc0 L_pb_chk
    L_b0done:
    s_mov_b64 exec, vcc
    """)
    for l in oloads(1): a(l)
    a("s_mov_b64 exec, -1")
    wo_mm(0); a("s_nop 6"); wo_fin(0)
    poll("L_po1", oloads(1), range(160, 176), 4, first_issued=True)
    TS(7)
    wo_mm(1); a("s_nop 6"); wo_fin(1)
    a(f"""
    s_branch L_wojoin
    L_b1done:
    s_cmp_eq_u64 s[84:85], 0
    s_cbranch_scc1 L_bothdone
    s_mov_b64 exec, s[84:85]
    """)
    for l in oloads(0): a(l)
    a("s_mov_b64 exec, -1")
    wo_mm(1); a("s_nop 6"); wo_fin(1)
    poll("L_po0", oloads(0), range(144, 160), 4, first_issued=True)
    TS(7)
    wo_mm(0); a("s_nop 6"); wo_fin(0)
    a("s_branch L_wojoin\nL_bothdone:")
    TS(7)
    wo_mm(0); wo_mm(1); wo_fin(0); wo_fin(1)
    a("L_wojoin:")
    a(f"""
    s_cmp_lg_u32 s28, 0
    s_nop 0
    v_permlane16_swap_b32 v24, v26
    v_add_f32 v24, v24, v26
    ds_write_b32 v132, v24 offset:{L_RED}
    s_mov_b32 exec_hi, 0
    s_waitcnt lgkmcnt(0)
    s_barrier ; B4
    s_cbranch_scc1 {"L_wba" if "a" in wb else "L_end2"}
    ds_read_b128 v[16:19], v133 offset:{L_RED}
    ds_read_b128 v[20:23], v133 offset:{L_RED+16}
    s_waitcnt lgkmcnt(0)
    v_pk_add_f32 v[16:17], v[16:17], v[18:19]
    v_pk_add_f32 v[20:21], v[20:21], v[22:23]
    v_pk_add_f32 v[16:17], v[16:17], v[136:137]
    v_pk_add_f32 v[16:17], v[16:17], v[20:21]
    v_cvt_pk_bf16_f32 v16, v16, v17
    v_min_u32 v16, -2, v16
    global_store_dword v134, v16, s[26:27] sc1
    """)
    TS(8)
    a("L_end2:")
    END()
    if "a" in wb:
        a("""L_wba:
        s_lshl_b32 s38, s30, 2
        s_add_u32 s38, s38, s28
        s_cmp_lg_u32 s38, 1
        s_cbranch_scc1 L_end2
        buffer_wbl2 sc1
        s_waitcnt vmcnt(0)
        s_branch L_end2""")
    oslow("w")
    a(f"""
    L_knotwo:
    v_and_b32 v120, 7, v0
    v_lshlrev_b32 v120, 7, v120
    v_add_u32 v120, {GRDY}, v120
    global_load_dword v121, v120, s[26:27] sc1
    s_cmp_ge_u32 s95, 2
    s_cbranch_scc1 L_kfinal
    """)
    fearly = all(c in "E" for c in fp)
    ffn_w("M")
    a(f"""
    s_mul_i32 s39, s28, 3584
    v_lshlrev_b32 v6, 8, v3
    v_lshl_add_u32 v6, v2, 3, v6
    s_add_u32 s38, s39, {L_G}
    v_add_u32 v118, s38, v6
    v_lshlrev_b32 v8, 8, v7
    v_lshl_add_u32 v8, v2, 3, v8
    v_add_u32 v8, s38, v8
    s_lshl_b32 s38, s28, 3
    v_lshl_add_u32 v40, v2, 5, s38
    v_lshlrev_b32 v41, 5, v2
    s_mul_i32 s38, s28, 112
    v_lshl_add_u32 v9, v3, 3, s38
    v_lshl_add_u32 v10, v7, 3, s38
    v_lshlrev_b32 v11, 6, v2
    v_add_u32 v11, {HBUF}, v11
    v_lshrrev_b32 v4, 5, v9
    v_and_b32 v9, 31, v9
    v_lshl_add_u32 v9, v9, 1, v11
    v_lshl_add_u32 v9, v4, 10, v9
    v_lshrrev_b32 v4, 5, v10
    v_and_b32 v10, 31, v10
    v_lshl_add_u32 v10, v10, 1, v11
    v_lshl_add_u32 v10, v4, 10, v10
    """)
    for r in range(8): a(f"v_mov_b32 v{96+r}, {ONES if r == 0 else 'v96'}")
    oreduce("f")
    if pbar: a("s_barrier")
    ffn_w("L")
    diag_masks(12)
    a(f"""
    s_lshl_b32 s38, s28, 8
    v_lshl_add_u32 v11, v0, 2, s38
    v_lshrrev_b32 v42, 3, v2
    v_lshlrev_b32 v42, 7, v42
    v_lshl_add_u32 v117, v3, 4, v42
    v_lshrrev_b32 v4, 1, v3
    v_mul_u32_u24 v4, 14, v4
    v_lshrrev_b32 v42, 2, v2
    v_add_u32 v4, v4, v42
    v_mul_u32_u24 v4, 7168, v4
    v_lshl_add_u32 v4, v5, 4, v4
    s_and_b32 s46, s46, 0xffff
    s_mul_i32 s38, s28, {4*7168}
    s_lshl_b32 s41, s45, 6
    s_add_u32 s38, s38, s41
    s_add_u32 s38, s38, {PBUF}
    v_add_u32 v116, s38, v4
    """)
    grcheck("f")
    a("s_waitcnt vmcnt(0)")
    TS(5)
    for m in range(2):
        for t in range(4):
            for hh in range(2):
                a(f"ds_read_b64_tr_b16 {v2(64+16*m+4*t+2*hh)}, v{118 if t<3 else 8} offset:{14336*m+1024*t+128*hh}")
    a("s_waitcnt lgkmcnt(0)\ns_mov_b32 exec_lo, 0")
    for r in range(4): a(f"v_mov_b32 v{76+r}, 0\nv_mov_b32 v{92+r}, 0\nv_mov_b32 v{100+r}, 0")
    a("s_mov_b32 exec_lo, -1\ns_nop 0")
    for t in range(4):
        for m in range(2): mfma(104+4*m, 96, 64+16*m+4*t, t == 0)
    a(f"""
    s_nop 6
    v_mul_f32 v104, {hex(f2u(-1/448))}, v104
    v_mul_f32 v105, {hex(f2u(-1/448))}, v108
    ds_write_b64 v40, v[104:105] offset:{L_CS}
    s_waitcnt lgkmcnt(0)
    s_barrier ; B4
    ds_read_b128 v[104:107], v41 offset:{L_CS}
    ds_read_b128 v[108:111], v41 offset:{L_CS+16}
    s_waitcnt lgkmcnt(0)
    v_pk_add_f32 v[104:105], v[104:105], v[106:107]
    v_pk_add_f32 v[108:109], v[108:109], v[110:111]
    v_pk_add_f32 v[44:45], v[104:105], v[108:109]
    """)
    TS(7)
    if d2: a(f"s_sleep {d2}")
    poll("L_ph", [f"global_load_dwordx4 {v4(16+4*t)}, v9, s[26:27] offset:{1024*t} sc1" for t in range(3)] +
                 [f"global_load_dwordx4 v[28:31], v10, s[26:27] offset:3072 sc1"], range(16, 32), 4, slp=slp2)
    TS(8)
    for t in range(4): mfma(112, 16+4*t, 96 if t < 3 else 100, t == 0)
    for t in range(4): mfma(104, 16+4*t, 64+4*t, t == 0)
    for t in range(4): mfma(108, 16+4*t, 80+4*t, t == 0)
    a(f"""
    v_pk_add_f32 v[112:113], v[112:113], v[114:115]
    s_nop 2
    v_pk_add_f32 v[104:105], v[104:105], v[106:107]
    v_pk_fma_f32 v[104:105], v[112:113], v[44:45], v[104:105] op_sel_hi:[1,0,1]
    s_nop 1
    v_pk_add_f32 v[108:109], v[108:109], v[110:111]
    v_pk_fma_f32 v[108:109], v[112:113], v[44:45], v[108:109] op_sel:[0,1,0] op_sel_hi:[1,1,1]
    v_permlane32_swap_b32 v104, v105
    v_add_f32 v104, v104, v105
    v_permlane32_swap_b32 v108, v109
    v_add_f32 v108, v108, v109
    s_nop 1
    v_permlane16_swap_b32 v104, v108
    v_add_f32 v104, v104, v108
    ds_write_b32 v11, v104 offset:{L_RED}
    s_waitcnt lgkmcnt(0)
    s_barrier ; B5
    """)
    for w in range(4):
        for m in range(2): a(f"ds_read_b128 {v4(16+8*w+4*m)}, v117 offset:{L_RED+256*w+64*m}")
    a("s_waitcnt lgkmcnt(4)")
    for i in range(4): a(f"v_pk_add_f32 {v2(16+2*i)}, {v2(16+2*i)}, {v2(24+2*i)}")
    a("s_waitcnt lgkmcnt(0)")
    for i in range(4): a(f"v_pk_add_f32 {v2(32+2*i)}, {v2(32+2*i)}, {v2(40+2*i)}")
    for i in range(4): a(f"v_pk_add_f32 {v2(16+2*i)}, {v2(16+2*i)}, {v2(32+2*i)}")
    a("v_pk_mul_f32 v[16:17], v[16:17], v[20:21]\nv_pk_mul_f32 v[18:19], v[18:19], v[22:23]")
    for i in range(4): a(f"v_cvt_pk_bf16_f32 v{16+i}, v{16+i}, v{16+i}")
    for i in range(4):
        for r in range(4): a(f"v_and_b32 v{64+4*i+r}, v{16+i}, v{12+r}")
        if i: mfma(104, 64+4*(i-1), 48+4*(i-1), i == 1)
    a("s_nop 0")
    mfma(104, 76, 60, False)
    a(f"""
    s_nop 7
    v_cvt_pk_bf16_f32 v104, v104, v105
    v_cvt_pk_bf16_f32 v105, v106, v107
    v_min_u32 v104, -2, v104
    v_min_u32 v105, -2, v105
    s_nop 0
    v_permlane16_swap_b32 v104, v106
    v_permlane16_swap_b32 v105, v107
    s_mov_b32 exec_lo, s46
    s_mov_b32 exec_hi, s46
    global_store_dwordx4 v116, v[104:107], s[26:27] sc1
    """)
    TS(9)
    END()
    oslow("f")
    a("L_kfinal:\ns_waitcnt vmcnt(1)")
    oreduce("z")
    if "b" in wb:
        a("""s_lshl_b32 s38, s30, 2
        s_add_u32 s38, s38, s28
        s_cmp_lg_u32 s38, 61
        s_cbranch_scc1 L_nowbb
        buffer_wbl2 sc1
        L_nowbb:""")
    a(f"""
    s_cmp_eq_u32 s95, 3
    s_cbranch_scc1 L_end2
    """)
    diag_masks(40)
    a(f"""
    v_lshrrev_b32 v6, 3, v2
    v_cmp_eq_u32 vcc, v6, v7
    v_mov_b32 v6, {ONES}
    v_and_b32 v44, v40, v6
    v_and_b32 v45, v41, v6
    v_and_b32 v46, v42, v6
    v_and_b32 v47, v43, v6
    v_cndmask_b32 v40, 0, v44, vcc
    v_cndmask_b32 v41, 0, v45, vcc
    v_cndmask_b32 v42, 0, v46, vcc
    v_cndmask_b32 v43, 0, v47, vcc
    v_lshrrev_b32 v9, 2, v2
    v_lshlrev_b32 v9, 10, v9
    v_lshl_add_u32 v9, v3, 6, v9
    v_lshl_add_u32 v9, v5, 4, v9
    s_lshl_b32 s38, s28, 12
    s_add_u32 s38, s38, {HBUF}
    v_add_u32 v9, s38, v9
    v_lshrrev_b32 v10, 1, v3
    v_mul_u32_u24 v10, 896, v10
    v_lshl_add_u32 v10, v2, 4, v10
    v_lshl_add_u32 v10, v7, 3, v10
    s_lshl_b32 s38, s28, 8
    v_add_u32 v10, s38, v10
    """)
    grcheck("z")
    if d2: a(f"s_sleep {d2+30}")
    poll("L_ph2", [f"global_load_dwordx4 {v4(16+4*t)}, v9, s[26:27] offset:{256*t} sc1" for t in range(4)], range(16, 32), 4,
         mask=("s46", "s46"), slp=slp2f)
    TS(7)
    for t in range(4): mfma(48, 40, 16+4*t, t == 0)
    a(f"""
    s_mov_b32 exec_lo, s46
    s_mov_b32 exec_hi, s46
    s_nop 5
    v_cvt_pk_bf16_f32 v48, v48, v49
    v_cvt_pk_bf16_f32 v49, v50, v51
    ds_write_b64 v10, v[48:49] offset:{L_XN}
    s_mov_b64 exec, -1
    s_waitcnt lgkmcnt(0)
    s_barrier ; B4
    s_cmp_lg_u32 s28, 0
    s_cbranch_scc1 L_end2
    v_and_b32 v4, 31, v0
    v_cmp_gt_u32 s[36:37], 28, v4
    s_cmp_ge_u32 s44, 14
    s_cselect_b32 s38, 896, 0
    v_lshl_add_u32 v12, v4, 5, s38
    """)
    for i in range(8): a(f"v_mov_b32 v{16+i}, 0")
    a(f"""
    v_lshlrev_b32 v13, 4, v5
    v_lshl_add_u32 v13, v7, 3, v13
    s_lshl_b32 s38, s44, 6
    v_add_u32 v13, s38, v13
    ds_read_b64 v[60:61], v13 offset:{L_XN}
    s_mov_b64 exec, s[36:37]
    ds_read_b128 v[16:19], v12 offset:{L_XN}
    ds_read_b128 v[20:23], v12 offset:{L_XN+16}
    s_mov_b64 exec, -1
    s_mul_i32 s38, s44, 7168
    s_add_u32 s38, s38, {PBUF+4096}
    v_lshl_add_u32 v9, v0, 4, s38
    v_mov_b32 v15, 0
    v_mov_b32 v14, s33
    s_waitcnt lgkmcnt(0)
    """)
    ln_stats(16, 64, 48, 50, 51)
    a(f"""
    v_rcp_f32 v50, v50
    v_and_b32 v63, s94, v61
    v_lshlrev_b32 v62, 16, v61
    v_and_b32 v61, s94, v60
    v_lshlrev_b32 v60, 16, v60
    v_mul_f32 v50, v50, v50
    """)
    TS(8)
    if d3: a(f"s_sleep {d3}")
    poll("L_pp", [f"global_load_dwordx4 {v4(64+4*t)}, v9, s[26:27] offset:{1024*t-4096} sc1" for t in range(7)], range(64, 92), 4, slp=slp3)
    TS(5)
    for t in range(7): mfma(16, 44, 64+4*t, t == 0)
    a("s_cmp_lg_u32 s44, 0\ns_nop 6")
    for n in (4, 8):
        for r in range(4): a(f"v_add_f32_dpp v{16+r}, v{16+r}, v{16+r} row_ror:{n} row_mask:0xf bank_mask:0xf")
    a(f"""
    s_mov_b64 exec, 0x000f000f
    v_pk_mul_f32 v[16:17], v[16:17], v[50:51] op_sel_hi:[1,0]
    v_pk_mul_f32 v[18:19], v[18:19], v[50:51] op_sel_hi:[1,0]
    v_cvt_pk_bf16_f32 v16, v16, v17
    v_cvt_pk_bf16_f32 v18, v18, v19
    v_and_b32 v17, s94, v16
    v_lshlrev_b32 v16, 16, v16
    v_and_b32 v19, s94, v18
    v_lshlrev_b32 v18, 16, v18
    v_pk_add_f32 v[16:17], v[16:17], v[60:61]
    v_pk_add_f32 v[18:19], v[18:19], v[62:63]
    v_cvt_pk_bf16_f32 v16, v16, v17
    v_cvt_pk_bf16_f32 v17, v18, v19
    global_store_dwordx2 v13, v[16:17], s[22:23]
    s_cbranch_scc1 L_end3
    s_mov_b64 exec, 1
    global_store_dword v15, v14, s[26:27] offset:{EPOCH} sc1
    L_end3:
    """)
    TS(9)
    END()
    oslow("z")
    if ts and diag:
        wg, wv, i0, i1 = diag
        a(f"""
        L_tsout:
        s_memrealtime s[80:81]
        s_cmp_lg_u32 s2, {wg}
        s_cbranch_scc1 L_dend
        s_cmp_lg_u32 s28, {wv}
        s_cbranch_scc1 L_dend
        s_waitcnt lgkmcnt(0)
        s_sub_u32 s38, s{60+2*i1}, s{60+2*i0}
        s_min_u32 s38, s38, 5000
        s_add_u32 s38, s38, 6000
        L_dspin:
        s_memrealtime s[82:83]
        s_waitcnt lgkmcnt(0)
        s_sub_u32 s39, s82, s60
        s_cmp_lt_u32 s39, s38
        s_cbranch_scc1 L_dspin
        L_dend:
        s_endpgm
        """)
    elif ts:
        a(f"""
        L_tsout:
        s_memrealtime s[80:81]
        {"s_sleep 100" if ts != 3 else ""}
        s_mov_b64 exec, 1
        s_lshl_b32 s38, s2, 3
        s_add_u32 s38, s38, s28
        s_lshl_b32 s38, s38, 6
        s_add_u32 s38, s38, {TSBUF}
        v_mov_b32 v4, s38
        s_mov_b32 s82, s48
        s_waitcnt lgkmcnt(0)
        """)
        for i in range(12): a(f"v_mov_b32 v{16+i}, s{60+2*i}")
        for i in range(3): a(f"global_store_dwordx4 v4, {v4(16+4*i)}, s[26:27] offset:{16*i}")
        a("s_endpgm")
    if skip:
        def drop(t):
            if "q" in skip and "s[10:11]" in t and t.startswith("global_load"): return True
            if "c" in skip and t.startswith("global_store_dwordx4 v13, v[24:27]"): return True
            if "d" in skip and t.startswith("global_load") and "s[20:21]" in t: return True
            if "o" in skip and t.startswith("global_load_lds") and "s[12:13]" in t and " v9," not in t: return True
            if "f" in skip and t.startswith("global_load_lds") and ("s[16:17]" in t or "s[18:19]" in t): return True
            if "p" in skip and t.startswith("global_store") and ("v4, v[32:35]" in t or "v7, v36" in t): return True
            return False
        a.items = [(k, "s_nop 0" if drop(t) else t, n) for k, t, n in a.items]
    sz0 = 0
    for (k, t, n), in zip(a.items):
        pass
    if hop:
        nb, size = insert_pads(a, lambda n, nb: f"Lpad{n+3}" if n + 3 < nb else "L_back")
    errs = check_hazards(a.items)
    for e in errs: print(e, file=sys.stderr)
    hdr = open("cdna_kernels/" + KNAME[:-7] + ".s.ref").read().split("; Override")[0]
    return f"""{hdr}; @launch grid=(256,1,1) block=(512,1,1) lds={LDS_BYTES}
.amdgcn_target "amdgcn-amd-amdhsa--gfx950"
.text
.globl {KNAME}
.p2align 10
.fill 64, 4, 0xbf810000
.p2align 8
.type {KNAME},@function
{KNAME}:
{a.text()}
.section .rodata,"a"
.p2align 6
.amdhsa_kernel {KNAME}
  .amdhsa_next_free_vgpr 256
  .amdhsa_next_free_sgpr 96
  .amdhsa_accum_offset 256
  .amdhsa_group_segment_fixed_size 0
  .amdhsa_kernarg_size 96
  .amdhsa_user_sgpr_count 2
  .amdhsa_user_sgpr_kernarg_segment_ptr 1
  .amdhsa_system_sgpr_workgroup_id_x 1
  .amdhsa_float_denorm_mode_32 3
.end_amdhsa_kernel
"""

if __name__ == "__main__":
    kw = {}
    out = sys.argv[1]
    for x in sys.argv[2:]:
        k, v = x.split("=")
        kw[k] = eval(v) if v[:1].isdigit() or v[:1] == "(" or v in ("True", "False") else v.replace("+", " ")
    open(out, "w").write(gen(**kw))
```

```python
import sys, struct
from alib import *

def f2u(x): return struct.unpack("<I", struct.pack("<f", x))[0]
LOG2E = 1.4426950408889634
ONES = "0x3f803f80"

EPOCH, XCC1, XCC2, DONE, GRDY = 0, 0x400, 0x800, 0xC00, 0x1000
OBUF, LSE, DELTA = 0x20000, 0x60000, 0x48000
HBUF, PBUF = 0xB0000, 0xB4000
QBUF = 0x140000
TSBUF = 0x100000
L_XN, L_STAT, L_FLAG, L_RED, L_CS, L_Q = 0, 0x700, 0x780, 0x800, 0x1000, 0x1400
L_P, L_ORED, L_XD, L_W = 0x2000, 0x6000, 0x8000, 0xC000
L_G, L_U = L_W, L_W + 14336
L_DUMMY = 0x9000
LDS_BYTES = 0x14800
TMO = 1 << 17

def gen(ts=0, qfl="nt", kvfl="nt", wfl="", ffl="", dfl="nt", hop=True, opiece=32, fast=True, win=5, winb=6, nb=24, wint=6, gpl=3, bsel="KV", tlb=0, pbar=1, krot=1, slots=(),
        wop="MM", worot=1, fp="LLLL", frot=1, wdp="M", slp1=1, slp2=0, slp2f=0, slp3=0, slpthr=16, d3=13, diag=None, skip="", w0=0, b1w=99, esc=24, pclr="Q", forceesc=0, remap=1, tgu="X", d2=0, wb="", hpre=1, wdpos=1, ofl="", efl="sc1", dirty=0, bn=16):
    a = Asm()
    P = opiece; lp = P.bit_length() - 1
    def TS(i):
        if ts in (1, 3) or (ts and i == 0): a(f"s_memrealtime s[{60+2*i}:{61+2*i}]")
    def END():
        a("s_branch L_tsout" if ts else "s_endpgm")
    def v4(r): return f"v[{r}:{r+3}]"
    def v2(r): return f"v[{r}:{r+1}]"
    def mfma(d, A, B, first): a(f"v_mfma_f32_16x16x32_bf16 {v4(d)}, {v4(A)}, {v4(B)}, {'0' if first else v4(d)}")
    def xrow(op, v, t, sixteen=True, thirty2=True):
        for name, on in (("16", sixteen), ("32", thirty2)):
            if on:
                a(f"v_mov_b32 v{t}, v{v}\ns_nop 1\nv_permlane{name}_swap_b32 v{v}, v{t}\n{op} v{v}, v{v}, v{t}")
    def inrow_add(v):
        for n in (8, 4, 2, 1):
            a(f"s_nop 1\nv_add_f32_dpp v{v}, v{v}, v{v} row_ror:{n} row_mask:0xf bank_mask:0xf")
    def rbf(v):
        a(f"v_cvt_pk_bf16_f32 v{v}, v{v}, v{v}\nv_and_b32 v{v}, s94, v{v}")
    def ln_stats(raw, f, m, d, t):
        for i in range(8):
            a(f"v_lshlrev_b32 v{f+2*i}, 16, v{raw+i}\nv_and_b32 v{f+2*i+1}, s94, v{raw+i}")
        a(f"v_add_f32 v{m}, v{f}, v{f+1}")
        for i in range(2, 16): a(f"v_add_f32 v{m}, v{m}, v{f+i}")
        inrow_add(m); xrow("v_add_f32", m, t, True, False)
        a(f"v_mul_f32 v{m}, {hex(f2u(1/448))}, v{m}")
        a(f"v_sub_f32 v{t}, v{f}, v{m}\nv_mul_f32 v{d}, v{t}, v{t}")
        for i in range(1, 16): a(f"v_sub_f32 v{t}, v{f+i}, v{m}\nv_fmac_f32 v{d}, v{t}, v{t}")
        a(f"v_cndmask_b32 v{d}, 0, v{d}, s[36:37]")
        inrow_add(d); xrow("v_add_f32", d, t, True, False)
        a(f"v_mul_f32 v{d}, {hex(f2u(1/448))}, v{d}")
        rbf(d)
        a(f"v_add_f32 v{d}, {hex(f2u(1e-5))}, v{d}")
        rbf(d)
        a(f"v_sqrt_f32 v{d}, v{d}")
        rbf(m)
        rbf(d)
    def diag_masks(base, t0=4, t1=6):
        a(f"""v_and_b32 v{t0}, 1, v2
        v_lshlrev_b32 v{t0}, 4, v{t0}
        v_mov_b32 v{t1}, 0xffff
        v_lshlrev_b32 v{t1}, v{t0}, v{t1}
        v_bfe_u32 v{t0}, v2, 1, 2""")
        for r in range(4):
            a(f"v_cmp_eq_u32 vcc, {r}, v{t0}\ns_nop 1\nv_cndmask_b32 v{base+r}, 0, v{t1}, vcc")
    def poll(name, loads, regs_, t, mask=None, first_issued=False, slp=0):
        a(f"s_mov_b32 s40, {TMO}")
        if mask: a(f"s_mov_b32 exec_lo, {mask[0]}\ns_mov_b32 exec_hi, {mask[1]}")
        if first_issued: a(f"s_branch {name}_chk")
        elif slp: a(f"s_branch {name}_ld")
        a(f"{name}:")
        if slp:
            a(f"s_bcnt1_i32_b64 s47, exec\ns_cmp_le_u32 s47, {slpthr}\ns_cbranch_scc1 {name}_ld\ns_sleep {slp}\n{name}_ld:")
        for l in loads: a(l)
        a(f"s_sub_u32 s40, s40, 1\ns_cbranch_scc1 {name}_done")
        a(f"{name}_chk:\ns_waitcnt vmcnt(0)")
        r = list(regs_)
        a(f"v_max3_u32 v{t}, v{r[0]}, v{r[1]}, v{r[2]}"); r = r[3:]
        while len(r) >= 2:
            a(f"v_max3_u32 v{t}, v{t}, v{r[0]}, v{r[1]}"); r = r[2:]
        if r: a(f"v_max_u32 v{t}, v{t}, v{r[0]}")
        a(f"v_cmp_eq_u32 vcc, -1, v{t}")
        a(f"s_and_b64 exec, exec, vcc")
        a.nopad += 1
        a(f"s_cbranch_scc1 {name}\n{name}_done:\ns_mov_b64 exec, -1")
        a.nopad -= 1
    def after(n, upto):
        return (upto - 1 - n) + sum(1 for x in slots if n <= x < upto)
    def oreduce(tag):
        a("s_cmp_eq_u32 s49, 0\ns_waitcnt lgkmcnt(0)\ns_barrier ; B3")
        TS(6)
        for i in range(4): a(f"ds_read_b64 {v2(24+2*i)}, v13 offset:{L_ORED+2048*i}")
        a(f"""
        s_waitcnt lgkmcnt(0)
        v_pk_mul_f32 v[24:25], v[24:25], v[16:17] op_sel_hi:[1,0]
        v_pk_mul_f32 v[28:29], v[28:29], v[20:21] op_sel_hi:[1,0]
        v_pk_fma_f32 v[24:25], v[26:27], v[18:19], v[24:25] op_sel_hi:[1,0,1]
        v_pk_fma_f32 v[28:29], v[30:31], v[22:23], v[28:29] op_sel_hi:[1,0,1]
        v_pk_add_f32 v[24:25], v[24:25], v[28:29]
        v_cvt_pk_bf16_f32 v24, v24, v25
        v_min_u32 v24, -2, v24
        s_cbranch_scc0 L_oslow{tag}
        global_store_dword v14, v24, s[26:27]
        L_opub{tag}:
        """)
        if "t" in skip: END()
    def oslow(tag):
        a(f"""
        L_oslow{tag}:
        global_store_dword v14, v24, s[26:27] sc1
        s_lshl_b32 s38, s29, 7
        s_lshl_b32 s39, s30, 2
        s_add_u32 s39, s39, s38
        v_mov_b32 v4, s39
        v_mov_b32 v6, s33
        s_waitcnt vmcnt(0)
        s_barrier
        s_cmp_lg_u32 s28, 0
        s_cbranch_scc1 L_osl1{tag}
        global_store_dword v4, v6, s[26:27] offset:{DONE} sc1
        L_osl1{tag}:
        """)
        if tag == "w":
            a(f"""
            v_and_b32 v4, 31, v0
            v_lshl_add_u32 v4, v4, 2, s38
            s_mov_b32 s40, {TMO}
            L_osl2:
            global_load_dword v6, v4, s[26:27] offset:{DONE} sc1
            s_sub_u32 s40, s40, 1
            s_cbranch_scc1 L_opubw
            s_waitcnt vmcnt(0)
            v_cmp_ne_u32 vcc, s33, v6
            s_sleep 2
            s_cbranch_vccnz L_osl2
            """)
        a(f"s_branch L_opub{tag}")
    def grcheck(tag):
        a(f"""
        s_mov_b32 s40, {TMO}
        s_branch L_gr{tag}_chk
        L_gr{tag}:
        s_sleep 2
        global_load_dword v121, v120, s[26:27] sc1
        s_sub_u32 s40, s40, 1
        s_cbranch_scc1 L_gr{tag}_done
        L_gr{tag}_chk:
        s_waitcnt vmcnt(0)
        v_cmp_ne_u32 vcc, s33, v121
        s_cbranch_vccnz L_gr{tag}
        L_gr{tag}_done:
        """)
    def wdload():
        a("s_mov_b32 exec_lo, s46\ns_mov_b32 exec_hi, s46")
        for i in range(4): a(f"global_load_dwordx4 {v4(48+4*i)}, v43, s[20:21] offset:{896*i} {dfl}")
        a("s_mov_b64 exec, -1")

    def wo_w(ph):
        for hv in range(2):
            if wop[hv] == ph:
                a(f"s_mov_b32 m0, s{92+hv}\ns_nop 0")
                for i in range(4):
                    a(f"global_load_lds_dwordx4 v{44+hv}, s[12:13] offset:{1024*i} {wfl}")
                    if i < 3: a(f"v_add_u32 v{44+hv}, {16*896-1024}, v{44+hv}")
        if tgu == ph:
            a(f"""
            s_cmp_eq_u32 s29, 7
            s_cbranch_scc1 L_notg
            s_lshl_b32 s38, s32, 1
            s_and_b32 s39, s28, 1
            s_add_u32 s38, s38, s39
            s_mul_i32 s38, s38, {16*3584}
            s_lshl_b32 s39, s29, 9
            s_add_u32 s38, s38, s39
            v_lshrrev_b32 v4, 2, v0
            v_mul_u32_u24 v4, 3584, v4
            v_lshl_add_u32 v4, v5, 7, v4
            v_add_u32 v4, s38, v4
            s_cmp_ge_u32 s28, 2
            s_cselect_b64 s[54:55], s[18:19], s[16:17]
            global_load_dword v1, v4, s[54:55]
            L_notg:
            """)
    def ffn_w(ph):
        for k in range(4):
            if k == wdpos and wdp == ph: wdload()
            if fp[k] == ph:
                a(f"s_mov_b32 exec_hi, s{88+k}")
                for lb, sb in ((L_G, "s[16:17]"), (L_U, "s[18:19]")):
                    a(f"s_add_u32 m0, s{84+k}, {lb}\ns_nop 0")
                    a(f"global_load_lds_dwordx4 v{44+k}, {sb} {ffl}")
                a("s_mov_b32 exec_hi, -1")
        if wdp == ph and wdpos == 4: wdload()
    def wphase(ph):
        if ph == pclr:
            a(f"""
            s_cmp_lg_u32 s95, 2
            s_cbranch_scc1 L_nopc
            s_mul_i32 s38, s44, 7168
            s_mul_i32 s39, s28, 1792
            s_add_u32 s38, s38, s39
            s_add_u32 s38, s38, {PBUF}
            v_lshl_add_u32 v8, v0, 4, s38
            v_mov_b32 v48, -1
            v_mov_b32 v49, -1
            v_mov_b32 v50, -1
            v_mov_b32 v51, -1
            global_store_dwordx4 v8, v[48:51], s[26:27] sc1
            s_mov_b32 exec_hi, 0xffff
            global_store_dwordx4 v8, v[48:51], s[26:27] offset:1024 sc1
            s_mov_b32 exec_hi, -1
            L_nopc:
            """)
        if ph in wop:
            a(f"s_cmp_ge_u32 s30, 14\ns_cbranch_scc1 L_nowo{ph}")
            wo_w(ph)
            a(f"L_nowo{ph}:")
        if ph in fp + wdp:
            a(f"s_cmp_lg_u32 s95, 1\ns_cbranch_scc1 L_noffn{ph}")
            ffn_w(ph)
            a(f"L_noffn{ph}:")

    TS(0)
    a(f"""
    s_cmp_ge_u32 s2, 256
    s_cbranch_scc1 L_exit
    s_load_dwordx16 s[4:19], s[0:1], 0
    s_load_dwordx8 s[20:27], s[0:1], 64
    v_lshrrev_b32 v1, 6, v0
    v_and_b32 v0, 63, v0
    v_readfirstlane_b32 s28, v1
    s_and_b32 s29, s2, 7
    s_lshr_b32 s30, s2, 3
    s_lshr_b32 s31, s2, 7
    s_and_b32 s32, s30, 15
    v_and_b32 v2, 15, v0
    v_lshrrev_b32 v3, 4, v0
    v_and_b32 v5, 3, v0
    s_mov_b32 s94, 0xffff0000
    s_cmp_eq_u32 s28, 4
    s_cbranch_scc1 L_qwave
    """)
    if hop:
        a.nopad += 1
        a(f"""
        s_cmp_lt_u32 s28, 4
        s_cbranch_scc1 L_setup
        s_mov_b64 exec, 0
        s_cmp_eq_u32 s28, 6
        s_cbranch_scc1 Lpad3
        s_cmp_eq_u32 s28, 7
        s_cbranch_scc1 Lpad4
        s_branch Lpad2
        L_back:
        s_mov_b64 exec, -1
        """)
        a.nopad -= 1
    a(f"""
    L_setup:
    s_lshl_b32 s34, s31, 3
    s_add_u32 s34, s34, s29
    s_lshl_b32 s34, s34, 9
    s_and_b32 s35, s28, 3
    s_lshl_b32 s38, s35, 4
    s_add_u32 s38, s38, s32
    s_add_u32 s34, s34, s38
    s_lshl_b32 s34, s34, 4
    s_lshl_b32 s38, s35, 2
    {"s_xor_b32 s38, s38, s32" if krot == 1 else "s_nop 0"}
    s_add_u32 s34, s34, s38
    s_lshl_b32 s34, s34, 11
    s_add_u32 s34, s34, {28672*512}
    s_movk_i32 s50, 0x800
    s_movk_i32 s51, 0x1800
    s_movk_i32 s52, 0x3800
    s_movk_i32 s53, 0x7800
    v_lshrrev_b32 v4, 2, v2
    v_lshlrev_b32 v4, 9, v4
    v_lshl_add_u32 v4, v3, 6, v4
    v_lshl_add_u32 v4, v5, 4, v4
    v_add_u32 v8, s34, v4
    s_lshl_b32 s38, s29, 2
    s_add_u32 s38, s38, s35
    s_mul_i32 s38, s38, {128*896}
    s_lshl_b32 s39, s32, 6
    s_add_u32 s38, s38, s39
    v_lshrrev_b32 v4, 2, v0
    v_mul_u32_u24 v4, 896, v4
    v_lshl_add_u32 v4, v5, 4, v4
    v_add_u32 v4, s38, v4
    s_and_b32 s38, s32, {worot}
    s_lshl_b32 s92, s38, 12
    s_mul_i32 s38, s38, {64*896}
    v_add_u32 v44, s38, v4
    s_sub_u32 s38, {64*896}, s38
    v_add_u32 v45, s38, v4
    s_lshl_b32 s38, s35, 13
    s_add_u32 s92, s92, s38
    s_add_u32 s92, s92, {L_W}
    s_xor_b32 s93, s92, 0x1000
    """)
    useslots = "K" in wop or "V" in wop
    if not useslots: slots = ()
    if useslots:
        a(f"""
        v_mov_b32 v9, 0x2000
        s_movk_i32 s58, -1024
        s_mov_b32 m0, {L_DUMMY}
        s_cmp_ge_u32 s30, 14
        s_cbranch_scc1 L_sdone
        """)
        for hv in range(2):
            if wop[hv] in "KV":
                a(f"""
                s_cmp_{"ge" if wop[hv] == "K" else "lt"}_u32 s28, 4
                s_cbranch_scc1 L_sno{hv}
                v_mov_b32 v9, v{44+hv}
                s_movk_i32 s58, {16*896-1024}
                s_mov_b32 m0, s{92+hv}
                L_sno{hv}:
                """)
    a(f"""
    L_sdone:
    s_cmp_lt_u32 s30, {bn if "K" in bsel else 0}
    s_cselect_b64 vcc, -1, 0
    s_cmp_ge_u32 s28, 4
    s_waitcnt lgkmcnt(0)
    s_cbranch_scc1 L_vpre
    s_mov_b64 s[54:55], s[6:7]
    s_load_dword s33, s[26:27], {EPOCH}
    """)
    TS(1)
    def kvl(n, w_):
        i, hf = n // 2, n % 2
        if w_ and n >= w_: a(f"s_waitcnt vmcnt({w_-1})")
        a(f"global_load_dwordx4 {v4(128+4*n)}, v8, s[54:55] offset:{hf*256} {kvfl}")
        if hf and i < 15:
            tz = ((i + 1) & -(i + 1)).bit_length() - 1
            a(f"v_xor_b32 v8, s{50+tz}, v8")
    def stream(w_):
        for n in range(32):
            if n == nb: a("s_cbranch_scc1 L_vpost")
            kvl(n, w_)
    a("L_stream:")
    if winb != win: a("s_cbranch_vccnz L_streamb")
    stream(win)
    a("""
    s_cbranch_scc0 L_kwave
    s_branch L_vpost
    L_exit:
    s_endpgm
    .p2align 10
    """)
    a(f"""
    L_qwave:
    s_setprio 3
    v_and_b32 v4, 31, v0
    v_cmp_gt_u32 s[36:37], 28, v4
    v_lshrrev_b32 v7, 5, v0
    v_mul_u32_u24 v7, 896, v7
    v_lshl_add_u32 v12, v4, 5, v7
    """)
    a("""s_lshr_b32 s41, s30, 2
    s_lshl_b32 s42, s29, 2
    s_and_b32 s38, s30, 3
    s_add_u32 s42, s42, s38""")
    a(f"""
    s_mul_i32 s38, s41, {56*8192}
    s_lshl_b32 s39, s42, 8
    s_add_u32 s38, s38, s39
    v_mul_u32_u24 v6, {14*8192}, v3
    v_lshl_add_u32 v6, v2, 4, v6
    v_add_u32 v112, s38, v6
    s_movk_i32 s38, 0x2000
    """)
    for i in range(1, 14): a(f"v_add_u32 v{112+i}, s38, v{111+i}")
    for i in range(4): a(f"v_mov_b32 v{24+i}, -1")
    a(f"""
    s_lshl_b32 s43, s29, 5
    s_add_u32 s43, s43, s30
    s_lshl_b32 s38, s43, 10
    s_add_u32 s38, s38, {OBUF}
    v_lshl_add_u32 v13, v0, 4, s38
    s_lshl_b32 s38, s43, 3
    s_add_u32 s38, s38, {LSE}
    v_mov_b32 v15, s38
    v_min_u32 v14, {896+27*32}, v12
    s_waitcnt lgkmcnt(0)
    s_load_dword s33, s[26:27], {EPOCH}
    global_load_dwordx4 v[16:19], v14, s[4:5]
    global_load_dwordx4 v[20:23], v14, s[4:5] offset:16
    """)
    for i in range(14): a(f"global_load_dwordx4 {v4(128+4*i)}, v{112+i}, s[10:11] {qfl}")
    a(f"""
    global_store_dwordx4 v13, v[24:27], s[26:27]
    s_mov_b64 exec, 1
    global_store_dwordx2 v15, v[24:25], s[26:27]
    s_getreg_b32 s39, hwreg(HW_REG_XCC_ID, 0, 4)
    s_lshl_b32 s38, s43, 2
    v_mov_b32 v52, s38
    s_waitcnt lgkmcnt(0)
    s_add_u32 s33, s33, 0x9e3779b0
    s_andn2_b32 s33, s33, 15
    s_or_b32 s39, s39, s33
    v_mov_b32 v53, s39
    global_store_dword v52, v53, s[26:27] offset:{XCC1 if not forceesc else XCC1 - 0x200 if False else XCC1}
    s_min_u32 s38, s30, 14
    s_lshl_b32 s38, s38, 3
    s_add_u32 s38, s38, s29
    s_lshl_b32 s38, s38, 7
    s_add_u32 s38, s38, {HBUF}
    s_mov_b64 exec, 0xff
    v_lshl_add_u32 v13, v0, 4, s38
    s_cmp_ge_u32 s30, 14
    s_cbranch_scc1 L_nohclr
    global_store_dwordx4 v13, v[24:27], s[26:27] sc1
    L_nohclr:
    s_mov_b64 exec, -1
    """)
    if winb != win:
        a("s_branch L_qcomp\nL_streamb:")
        stream(winb)
        a("s_cbranch_scc0 L_kwave\ns_branch L_vpost\nL_qcomp:")
    wmax = 0 if 0 in (win, winb) else max(win, winb)
    TS(1)
    diag_masks(8)
    a("s_waitcnt vmcnt(17)")
    for i in range(8): a(f"v_cndmask_b32 v{16+i}, 0, v{16+i}, s[36:37]")
    ln_stats(16, 32, 48, 49, 50)
    a("v_rcp_f32 v49, v49")
    for i in range(16): a(f"v_sub_f32 v{32+i}, v{32+i}, v48")
    for i in range(8):
        a(f"v_cvt_pk_bf16_f32 v{16+i}, v{32+2*i}, v{33+2*i}")
    for i in range(8):
        a(f"v_lshlrev_b32 v{32+2*i}, 16, v{16+i}\nv_and_b32 v{33+2*i}, s94, v{16+i}")
    for i in range(16): a(f"v_mul_f32 v{32+i}, v{32+i}, v49")
    for i in range(16): a(f"v_cvt_pk_bf16_f32 v{32+i}, v{32+i}, v{32+i}")
    a(f"""
    v_lshlrev_b32 v12, 1, v12
    s_mov_b64 exec, s[36:37]
    """)
    for i in range(4): a(f"ds_write_b128 v12, {v4(32+4*i)} offset:{L_XD+16*i}")
    a(f"""
    s_mov_b64 exec, -1
    v_lshrrev_b32 v4, 3, v2
    v_mul_u32_u24 v4, 1792, v4
    v_mul_u32_u24 v7, 56, v3
    s_mul_i32 s38, s41, 224
    v_add3_u32 v7, v7, v4, s38
    s_waitcnt lgkmcnt(0)
    """)
    for i in range(7): a(f"ds_read_b64 {v2(16+2*i)}, v7 offset:{L_XD+8*i}")
    a(f"""
    s_lshl_b32 s38, s29, 7
    v_and_b32 v6, 31, v0
    v_lshl_add_u32 v54, v6, 2, s38
    global_load_dword v55, v54, s[26:27] offset:{XCC1} sc1
    s_lshl_b32 s38, s29, 15
    s_lshl_b32 s41, s41, 11
    s_add_u32 s38, s38, s41
    s_and_b32 s41, s42, 3
    s_lshl_b32 s41, s41, 9
    s_add_u32 s38, s38, s41
    s_add_u32 s38, s38, {QBUF}
    v_lshrrev_b32 v4, 5, v0
    v_lshlrev_b32 v4, 14, v4
    v_lshl_add_u32 v4, v6, 4, v4
    v_add_u32 v4, s38, v4
    s_lshr_b32 s41, s33, 4
    v_mov_b32 v37, s41
    v_lshrrev_b32 v38, 7, v37
    v_lshrrev_b32 v39, 14, v37
    v_lshrrev_b32 v40, 21, v37
    s_movk_i32 s41, 0x7f
    s_waitcnt lgkmcnt(0)
    """)
    for i in range(14):
        for r in range(4): a(f"v_and_b32 v{192+4*i+r}, v{16+i}, v{8+r}")
    a("s_waitcnt vmcnt(1)")
    TS(2)
    for i in range(14): mfma(32, 192+4*i, 128+4*i, i == 0)
    a(f"""
    s_mov_b32 s40, 0
    s_waitcnt vmcnt(0)
    v_cmp_ne_u32 vcc, s39, v55
    s_nop 4
    """)
    for r in range(4): a(f"v_add_u32 v{32+r}, 64, v{32+r}")
    for r in range(4): a(f"v_bfi_b32 v{32+r}, s41, v{37+r}, v{32+r}")
    a(f"""
    v_mov_b32 v28, 0
    v_mov_b32 v29, 0
    {"s_cbranch_vccnz L_px" if fast and not forceesc else "s_branch L_px"}
    L_qfast:
    global_store_dwordx4 v4, v[32:35], s[26:27]
    L_qpub:
    ds_write_b32 v28, v29 offset:{L_FLAG}
    s_setprio 0
    """)
    TS(3)
    a(f"""
    s_branch L_setup
    L_px:
    s_sleep 2
    s_add_u32 s40, s40, 1
    s_cmp_lg_u32 s40, {esc}
    s_cbranch_scc1 L_px1
    s_mov_b64 exec, 1
    global_store_dword v52, v53, s[26:27] offset:{XCC2} sc1
    s_mov_b64 exec, -1
    L_px1:
    global_load_dword v55, v54, s[26:27] offset:{XCC1} sc1
    v_mov_b32 v56, 16
    s_cmp_lt_u32 s40, {esc}
    s_cbranch_scc1 L_px2
    global_load_dword v56, v54, s[26:27] offset:{XCC2} sc1
    s_waitcnt vmcnt(0)
    v_xor_b32 v56, s39, v56
    L_px2:
    s_waitcnt vmcnt(0)
    v_xor_b32 v55, s39, v55
    {"v_mov_b32 v55, 16" if forceesc else ""}
    v_min_u32 v55, v55, v56
    v_cmp_ne_u32 vcc, 0, v55
    {"s_cbranch_vccz L_qfast" if fast else "s_cbranch_vccz L_qslow"}
    v_add_u32 v55, -1, v55
    v_cmp_gt_u32 vcc, 15, v55
    s_cbranch_vccnz L_qslow
    s_cmp_lt_u32 s40, {TMO}
    s_cbranch_scc1 L_px
    L_qslow:
    global_store_dwordx4 v4, v[32:35], s[26:27] sc1
    s_mov_b64 exec, 1
    global_store_dword v52, v53, s[26:27] offset:{XCC2} sc1
    s_mov_b64 exec, -1
    v_mov_b32 v29, 0x100
    s_branch L_qpub
    """)
    a(f"""
    L_vpre:
    v_lshlrev_b32 v4, 9, v3
    v_lshl_add_u32 v4, v2, 4, v4
    v_add_u32 v8, s34, v4
    s_mov_b64 s[54:55], s[8:9]
    """)
    diag_masks(12)
    a(f"""
    s_lshl_b32 s38, s35, 12
    v_lshl_add_u32 v4, v0, 4, s38
    s_lshl_b32 s38, s35, 11
    v_lshrrev_b32 v7, 1, v3
    v_lshlrev_b32 v7, 10, v7
    v_lshl_add_u32 v7, v2, 5, v7
    v_and_b32 v6, 1, v3
    v_lshl_add_u32 v7, v6, 4, v7
    v_add_u32 v7, s38, v7
    s_cmp_lt_u32 s30, {bn if "V" in bsel else 0}
    s_cselect_b64 vcc, -1, 0
    s_cmp_ge_u32 s28, 4
    s_barrier ; B1
    s_branch L_stream
    L_vpost:
    """)
    TS(4)
    a("s_barrier ; B2")
    TS(5)
    for i in range(4): a(f"ds_read_b128 {v4(16+4*i)}, v4 offset:{L_P+1024*i}")
    st = dict(ands=0, mm=0)
    def do_ands(upto):
        while st["ands"] < min(upto, 16):
            i = st["ands"]
            for r in range(4): a(f"v_and_b32 v{64+4*i+r}, v{16+i}, v{12+r}")
            st["ands"] += 1
    def do_mm(n):
        do_ands(n // 2 + 2)
        mfma(32+4*(n%2), 64+4*(n//2), 128+4*n, n < 2); st["mm"] = n + 1
    for n in range(nb, 32):
        kvl(n, wint)
        if n == nb: a("s_waitcnt lgkmcnt(0)")
        if n == 31: a("s_barrier ; B2b")
        landed = n - wint
        cnt = 0
        while st["mm"] <= landed and (cnt < 2 * gpl or n == 31):
            do_mm(st["mm"]); cnt += 1
    if nb == 32: a("s_waitcnt lgkmcnt(0)\ns_barrier ; B2b")
    do_ands(16 if nb < 32 else 0)
    while st["mm"] < 32:
        n = st["mm"]
        if n > 31 - max(wmax, wint): a(f"s_waitcnt vmcnt({31-n})")
        do_mm(n)
    TS(6)
    a(f"""
    s_nop 5
    ds_write_b128 v7, v[32:35] offset:{L_ORED}
    s_nop 0
    ds_write_b128 v7, v[36:39] offset:{L_ORED+512}
    s_waitcnt lgkmcnt(0)
    s_barrier ; B3
    L_end:
    """)
    if ts == 3 or diag: END()
    else: a("s_endpgm")
    a(f"""
    L_kwave:
    s_lshl_b32 s42, s29, 1
    s_add_u32 s42, s42, s31
    s_lshl_b32 s38, s42, 14
    s_lshl_b32 s41, s28, 9
    s_add_u32 s38, s38, s41
    s_add_u32 s38, s38, {QBUF+4096}
    v_lshrrev_b32 v7, 5, v0
    v_lshlrev_b32 v12, 13, v7
    v_and_b32 v13, 31, v0
    v_lshl_add_u32 v12, v13, 4, v12
    v_add_u32 v12, s38, v12
    """)
    for i in range(4): a(f"global_load_dwordx4 {v4(16+4*i)}, v12, s[26:27] offset:{2048*i-4096} sc1")
    if b1w < 64: a(f"s_waitcnt vmcnt({b1w})")
    TS(2)
    a(f"""
    s_barrier ; B1
    """)
    if remap: a("""
    s_lshl_b32 s45, s29, 4
    s_add_u32 s45, s45, s32
    s_lshl_b32 s44, s29, 1
    s_add_u32 s44, s44, s32
    s_cmp_eq_u32 s29, 7
    s_cbranch_scc1 L_r7
    s_sub_u32 s44, s44, 14
    s_sub_u32 s95, 2, s31
    s_branch L_rd
    L_r7:
    s_cmp_lt_u32 s32, 14
    s_cselect_b32 s95, 2, 3
    L_rd:
    s_cmp_lt_u32 s30, 14
    s_cselect_b32 s95, 0, s95
    """)
    else: a("""
    s_mul_i32 s45, s29, 14
    s_add_u32 s45, s45, s32
    s_lshl_b32 s38, s31, 1
    s_add_u32 s38, s38, s32
    s_sub_u32 s38, s38, 14
    s_lshl_b32 s44, s29, 2
    s_add_u32 s44, s44, s38
    s_cmp_eq_u32 s29, 7
    s_cselect_b32 s95, 3, 2
    s_cmp_lt_u32 s32, 14
    s_cselect_b32 s95, s31, s95
    """)
    a(f"""
    v_lshrrev_b32 v4, 3, v2
    v_lshlrev_b32 v6, 9, v4
    v_lshl_add_u32 v6, v3, 6, v6
    v_lshl_add_u32 v6, v5, 4, v6
    v_mov_b32 v14, 0
    v_and_b32 v10, 1, v3
    v_mul_u32_u24 v10, 896, v10
    v_lshl_add_u32 v10, v2, 2, v10
    s_min_u32 s38, s32, 13
    s_lshl_b32 s38, s38, 6
    v_add_u32 v10, s38, v10
    s_cmp_ge_u32 s95, 2
    s_cselect_b64 s[54:55], s[22:23], s[4:5]
    s_mul_i32 s38, s45, {16*896}
    s_lshl_b32 s39, s28, 8
    s_add_u32 s38, s38, s39
    v_mul_u32_u24 v43, {4*896}, v3
    v_lshl_add_u32 v43, v2, 4, v43
    v_add_u32 v43, s38, v43
    s_cmp_eq_u32 s28, 3
    s_cselect_b32 s46, 0x00ff00ff, -1
    v_mov_b32 v46, 0
    v_mov_b32 v47, 0
    s_cmp_lt_u32 s30, 14
    s_cbranch_scc1 L_nofa
    s_lshl_b32 s38, s45, 5
    s_mul_i32 s39, s28, {112*3584}
    s_add_u32 s38, s38, s39
    v_lshrrev_b32 v9, 1, v0
    v_mul_u32_u24 v9, 3584, v9
    v_and_b32 v8, 1, v0
    v_lshl_add_u32 v9, v8, 4, v9
    v_add_u32 v9, s38, v9
    s_and_b32 s41, s45, {3 if frot else 0}
    s_mul_i32 s39, s28, 3584
    """)
    for k in range(4):
        a(f"""s_xor_b32 s38, s41, {k}
        s_cmp_eq_u32 s38, 3
        s_cselect_b32 s{88+k}, 0, -1
        s_lshl_b32 s{84+k}, s38, 10
        s_add_u32 s{84+k}, s{84+k}, s39
        s_mul_i32 s38, s38, {32*3584}
        v_add_u32 v{44+k}, s38, v9""")
    if tlb:
        a("""s_mov_b64 exec, 1
        global_load_dword v1, v14, s[16:17]
        global_load_dword v1, v14, s[18:19]
        global_load_dword v1, v14, s[20:21]
        s_mov_b64 exec, -1""")
    a("L_nofa:")
    wphase("E")
    a(f"""
    s_waitcnt lgkmcnt(0)
    s_add_u32 s33, s33, 0x9e3779b0
    s_andn2_b32 s33, s33, 15
    s_lshr_b32 s56, s33, 4
    s_lshr_b32 s57, s33, 11
    s_lshr_b32 s58, s33, 18
    s_lshr_b32 s59, s33, 25
    s_mov_b32 s40, {TMO}
    s_branch L_pq_chk
    L_pq:
    """)
    for i in range(4): a(f"global_load_dwordx4 {v4(16+4*i)}, v12, s[26:27] offset:{2048*i-4096} sc1")
    a(f"""
    s_sub_u32 s40, s40, 1
    s_cbranch_scc1 L_pq_done
    L_pq_chk:
    s_waitcnt vmcnt(0)
    v_xor_b32 v38, s56, v16
    """)
    for i in range(1, 16): a(f"v_bitop3_b32 v38, v{16+i}, s{56+i%4}, v38 bitop3:0xbe")
    a(f"""
    v_and_b32 v38, 0x7f, v38
    v_cmp_ne_u32 vcc, 0, v38
    s_and_b64 exec, exec, vcc
    """)
    a.nopad += 1
    a("s_cbranch_scc1 L_pq\nL_pq_done:\ns_mov_b64 exec, -1")
    a.nopad -= 1
    a("s_movk_i32 s38, 0xff80\ns_waitcnt vmcnt(0)\nglobal_load_dword v11, v10, s[54:55]")
    for i in range(16): a(f"v_and_b32 v{16+i}, s38, v{16+i}")
    for i in range(4): a(f"v_pk_add_f32 {v2(16+2*i)}, {v2(16+2*i)}, {v2(24+2*i)}")
    a(f"""
    v_pk_add_f32 v[16:17], v[16:17], v[20:21]
    v_pk_add_f32 v[18:19], v[18:19], v[22:23]
    s_nop 1
    v_permlane32_swap_b32 v16, v18
    v_permlane32_swap_b32 v17, v19
    v_pk_add_f32 v[16:17], v[16:17], v[18:19]
    v_cvt_pk_bf16_f32 v16, v16, v17
    v_lshlrev_b32 v7, 2, v7
    v_lshl_add_u32 v7, v2, 4, v7
    v_and_b32 v13, 1, v3
    v_lshl_add_u32 v7, v13, 3, v7
    s_lshl_b32 s38, s28, 8
    v_add_u32 v7, s38, v7
    v_mov_b32 v13, 1
    ds_write_b32 v7, v16 offset:{L_Q}
    s_mov_b64 exec, 1
    ds_add_u32 v14, v13 offset:{L_FLAG}
    s_mov_b64 exec, -1
    L_qwait:
    ds_read_b32 v13, v14 offset:{L_FLAG}
    s_sub_u32 s40, s40, 1
    s_cbranch_scc1 L_qgot
    s_waitcnt lgkmcnt(0)
    v_readfirstlane_b32 s48, v13
    s_and_b32 s38, s48, 0xff
    s_cmp_eq_u32 s38, 4
    s_cbranch_scc1 L_qgot
    s_sleep 1
    s_branch L_qwait
    L_qgot:
    ds_read_b128 v[32:35], v6 offset:{L_Q}
    ds_read_b128 v[36:39], v6 offset:{L_Q+256}
    s_mov_b32 s41, {hex(f2u(LOG2E / 16))}
    s_cmp_eq_u32 s48, 4
    s_cselect_b32 s49, 0, {DELTA}
    s_lshl_b32 s38, s28, 5
    s_add_u32 s38, s38, s30
    s_cmp_lg_u32 s38, 31
    s_cbranch_scc1 L_nogr
    s_lshl_b32 s38, s29, 7
    s_add_u32 s38, s38, {GRDY}
    v_mov_b32 v12, s38
    v_mov_b32 v13, s33
    s_mov_b64 exec, 1
    global_store_dword v12, v13, s[26:27] sc1
    s_mov_b64 exec, -1
    L_nogr:
    s_waitcnt lgkmcnt(0)
    """)
    TS(3)
    for i in range(16):
        mfma(64+4*i, 128+8*i, 32, True); mfma(64+4*i, 132+8*i, 36, False)
    for r in range(4):
        for i in range(16):
            if r == 0: a(f"v_mov_b32_dpp v{16+i}, v{64+4*i} quad_perm:[0,0,0,0] row_mask:0xf bank_mask:0xf")
            else: a(f"v_add_f32_dpp v{16+i}, v{64+4*i+r}, v{16+i} quad_perm:[{r},{r},{r},{r}] row_mask:0xf bank_mask:0xf")
    for i in range(8): a(f"v_cvt_pk_bf16_f32 v{32+i}, v{16+2*i}, v{17+2*i}")
    for i in range(8): a(f"v_lshlrev_b32 v{16+2*i}, 16, v{32+i}\nv_and_b32 v{17+2*i}, s94, v{32+i}")
    a("v_max3_f32 v40, v16, v17, v18")
    for i in range(6): a(f"v_max3_f32 v40, v40, v{19+2*i}, v{20+2*i}")
    a("v_max_f32 v40, v40, v31")
    xrow("v_max_f32", 40, 42)
    for i in range(16): a(f"v_sub_f32 v{16+i}, v{16+i}, v40")
    for i in range(16): a(f"v_mul_f32 v{16+i}, s41, v{16+i}")
    for i in range(16): a(f"v_exp_f32 v{16+i}, v{16+i}")
    a("v_mul_f32 v40, s41, v40\nv_add_f32 v41, v16, v17")
    for i in range(2, 16): a(f"v_add_f32 v41, v41, v{16+i}")
    xrow("v_add_f32", 41, 42)
    for i in range(16): a(f"v_cvt_pk_bf16_f32 v{16+i}, v{16+i}, v{16+i}")
    a(f"""
    s_lshl_b32 s38, s28, 12
    v_lshl_add_u32 v7, v0, 4, s38
    s_lshl_b32 s38, s28, 3
    v_lshl_add_u32 v12, v4, 5, s38
    """)
    for i in range(4): a(f"ds_write_b128 v7, {v4(16+4*i)} offset:{L_P+1024*i}")
    a(f"""
    ds_write_b64 v12, v[40:41] offset:{L_STAT}
    s_lshr_b32 s38, s28, 1
    s_lshl_b32 s39, s38, 5
    v_mov_b32 v12, s39
    s_lshl_b32 s39, s28, 9
    v_lshl_add_u32 v13, v0, 3, s39
    ; byte index in o vector: B = 256w + 4l ; addr = (B/P)*16P + s*P + B%P
    s_lshl_b32 s39, s28, 8
    v_lshl_add_u32 v7, v0, 2, s39
    v_lshrrev_b32 v14, {lp}, v7
    v_lshlrev_b32 v14, {lp+4}, v14
    v_and_b32 v7, {P-1}, v7
    s_lshl_b32 s39, s42, 14
    s_lshl_b32 s43, s32, {lp}
    s_add_u32 s39, s39, s43
    s_add_u32 s39, s39, {OBUF}
    s_add_u32 s39, s39, s49
    v_add3_u32 v14, v14, v7, s39
    s_lshl_b32 s39, s42, 7
    s_lshl_b32 s38, s38, 6
    s_add_u32 s39, s39, s38
    s_lshl_b32 s38, s32, 2
    s_add_u32 s39, s39, s38
    s_add_u32 s39, s39, {LSE}
    s_add_u32 s39, s39, s49
    v_mov_b32 v15, s39
    v_and_b32 v7, 1, v3
    """)
    wphase("Q")
    if dirty:
        a("s_lshl_b32 s38, s2, 2\ns_add_u32 s38, s38, s28\ns_lshl_b32 s38, s38, 12\ns_add_u32 s38, s38, 0x400000\nv_lshl_add_u32 v8, v0, 4, s38")
        for i in range(dirty): a(f"global_store_dwordx4 v8, v[16:19], s[26:27] offset:{1024*i}")
    a("s_waitcnt lgkmcnt(0)")
    TS(4)
    a("s_barrier ; B2")
    a(f"""
    ds_read_b128 v[16:19], v12 offset:{L_STAT}
    ds_read_b128 v[20:23], v12 offset:{L_STAT+16}
    s_waitcnt lgkmcnt(0)
    v_max3_f32 v24, v16, v18, v20
    v_max_f32 v24, v24, v22
    v_sub_f32 v16, v16, v24
    v_sub_f32 v18, v18, v24
    v_sub_f32 v20, v20, v24
    v_sub_f32 v22, v22, v24
    v_exp_f32 v16, v16
    v_exp_f32 v18, v18
    v_exp_f32 v20, v20
    v_exp_f32 v22, v22
    v_mul_f32 v25, v16, v17
    v_fmac_f32 v25, v18, v19
    v_fmac_f32 v25, v20, v21
    v_fmac_f32 v25, v22, v23
    v_rcp_f32 v26, v25
    v_log_f32 v25, v25
    v_mul_f32 v16, v16, v26
    v_mul_f32 v18, v18, v26
    v_mul_f32 v20, v20, v26
    v_mul_f32 v22, v22, v26
    v_add_f32 v25, v25, v24
    v_min_u32 v25, -2, v25
    s_bitcmp1_b32 s28, 0
    s_cbranch_scc1 L_nolse
    s_mov_b64 exec, 1
    s_cmp_eq_u32 s49, 0
    s_cbranch_scc1 L_lsefast
    global_store_dword v15, v25, s[26:27] sc1
    s_branch L_nolse
    L_lsefast:
    global_store_dword v15, v25, s[26:27]
    L_nolse:
    s_mov_b64 exec, -1
    """)
    wphase("N")
    a(f"""
    s_cmp_ge_u32 s30, 14
    s_cbranch_scc1 L_knotwo
    """)
    def ooff(t):
        B = 64 * t
        return (B // P) * 16 * P + B % P
    early = all(c in "KVE" for c in wop)
    def trreads():
        for t in range(4):
            for nt in range(2):
                for hh in range(2):
                    a(f"ds_read_b64_tr_b16 {v2(64+8*t+4*nt+2*hh)}, v131 offset:{2048*t+256*hh+32*nt}")
    if not any(c in wop for c in "QN"): a("s_waitcnt vmcnt(1)")
    else: a("s_waitcnt vmcnt(%d)" % (4 * sum(c in "QN" for c in wop)))
    a(f"""
    s_lshl_b32 s38, s29, 8
    s_lshr_b32 s39, s28, 1
    s_lshl_b32 s39, s39, 6
    s_add_u32 s38, s38, s39
    s_add_u32 s38, s38, {LSE}
    s_add_u32 s38, s38, s49
    v_lshl_add_u32 v130, v3, 4, s38
    v_lshlrev_b32 v131, 9, v3
    v_lshrrev_b32 v4, 2, v2
    v_lshl_add_u32 v131, v4, 6, v131
    v_lshl_add_u32 v131, v5, 3, v131
    s_lshl_b32 s38, s28, 13
    s_add_u32 s38, s38, {L_W}
    v_add_u32 v131, s38, v131
    """)
    if early: trreads()
    a(f"""
    s_lshl_b32 s38, s29, 15
    s_add_u32 s38, s38, {OBUF}
    s_add_u32 s38, s38, s49
    s_lshl_b32 s39, s28, 8
    v_lshl_add_u32 v4, v3, 4, s39
    v_lshrrev_b32 v128, {lp}, v4
    v_lshlrev_b32 v128, {lp+4}, v128
    v_and_b32 v4, {P-1}, v4
    v_add3_u32 v128, v128, v4, s38
    v_lshl_add_u32 v128, v2, {lp}, v128
    v_xor_b32 v129, 0x4000, v128
    v_lshlrev_b32 v132, 9, v7
    v_lshrrev_b32 v4, 1, v3
    v_lshl_add_u32 v132, v4, 8, v132
    v_lshrrev_b32 v4, 1, v2
    v_lshl_add_u32 v132, v4, 5, v132
    v_and_b32 v4, 1, v2
    v_lshl_add_u32 v132, v4, 2, v132
    s_lshl_b32 s39, s28, 3
    v_add_u32 v132, s39, v132
    v_lshlrev_b32 v133, 5, v0
    s_lshl_b32 s38, s29, 7
    s_lshl_b32 s39, s32, 10
    s_add_u32 s38, s38, s39
    s_add_u32 s38, s38, {HBUF}
    v_lshl_add_u32 v134, v0, 2, s38
    s_cmp_eq_u32 s29, 0
    s_cselect_b32 s38, -1, 0
    v_and_b32 v136, s38, v11
    v_and_b32 v137, s94, v136
    v_lshlrev_b32 v136, 16, v136
    """)
    a("s_barrier ; B2b")
    wo_w("M")
    oreduce("w")
    if pbar: a("s_barrier")
    wo_w("L")
    lloads = [f"global_load_dwordx4 {v4(176+4*b)}, v130, s[26:27] offset:{128*b} sc1" for b in range(2)]
    def oloads(b): return [f"global_load_dwordx4 {v4(144+16*b+4*t)}, v{128+b}, s[26:27] offset:{ooff(t)} sc1" for t in range(4)]
    for l in lloads + oloads(1) + oloads(0): a(l)
    if not early:
        a("s_waitcnt vmcnt(10)")
        trreads()
    a(f"""
    s_mov_b32 s40, {TMO}
    s_waitcnt vmcnt(8)
    s_branch L_pl_chk
    L_pl:
    {"s_sleep %d" % slp1 if slp1 else ""}
    {lloads[0]}
    {lloads[1]}
    s_sub_u32 s40, s40, 1
    s_cbranch_scc1 L_pl_done
    s_waitcnt vmcnt(0)
    L_pl_chk:
    v_max3_u32 v4, v176, v177, v178
    v_max3_u32 v4, v4, v179, v180
    v_max3_u32 v4, v4, v181, v182
    v_max_u32 v4, v4, v183
    v_cmp_eq_u32 vcc, -1, v4
    s_cbranch_vccnz L_pl
    L_pl_done:
    """)
    TS(9)
    for op, pre in (("v_max_f32", lambda b, e: [f"v_max3_f32 v{20+2*b}, v{e}, v{e+1}, v{e+2}", f"v_max_f32 v{20+2*b}, v{20+2*b}, v{e+3}"]),
                    ("v_add_f32", lambda b, e: [f"v_sub_f32 v{e+r}, v{e+r}, v{20+2*b}" for r in range(4)] + [f"v_exp_f32 v{e+r}, v{e+r}" for r in range(4)] +
                                               [f"v_add_f32 v{20+2*b}, v{e}, v{e+1}", f"v_add_f32 v{21+2*b}, v{e+2}, v{e+3}", f"v_add_f32 v{20+2*b}, v{20+2*b}, v{21+2*b}"])):
        for b in range(2):
            for x in pre(b, 176+4*b): a(x)
        for nm in ("16", "32"):
            a(f"""v_mov_b32 v21, v20
            v_mov_b32 v23, v22
            s_nop 0
            v_permlane{nm}_swap_b32 v20, v21
            v_permlane{nm}_swap_b32 v22, v23
            {op} v20, v20, v21
            {op} v22, v22, v23""")
    a("v_rcp_f32 v20, v20\nv_rcp_f32 v22, v22")
    for b in range(2):
        for r in range(4): a(f"v_mul_f32 v{176+4*b+r}, v{176+4*b+r}, v{20+2*b}")
    def chk(b, dst):
        r = 144 + 16 * b
        a(f"v_max3_u32 v4, v{r}, v{r+1}, v{r+2}")
        for i in range(3, 15, 2): a(f"v_max3_u32 v4, v4, v{r+i}, v{r+i+1}")
        a(f"v_max_u32 v4, v4, v{r+15}\nv_cmp_eq_u32 {dst}, -1, v4")
    def wo_mm(b):
        o = 144 + 16 * b; e = 176 + 4 * b; D = 32 + 8 * b
        for t in range(4):
            for nt in range(2): mfma(D+4*nt, o+4*t, 64+8*t+4*nt, t == 0)
    def wo_fin(b):
        e = 176 + 4 * b; D = 32 + 8 * b
        a(f"""
        v_mul_f32 v{24+2*b}, v{D}, v{e}
        v_mul_f32 v{25+2*b}, v{D+4}, v{e}
        v_fmac_f32 v{24+2*b}, v{D+1}, v{e+1}
        v_fmac_f32 v{25+2*b}, v{D+5}, v{e+1}
        v_fmac_f32 v{24+2*b}, v{D+2}, v{e+2}
        v_fmac_f32 v{25+2*b}, v{D+6}, v{e+2}
        v_fmac_f32 v{24+2*b}, v{D+3}, v{e+3}
        v_fmac_f32 v{25+2*b}, v{D+7}, v{e+3}
        s_nop 1
        v_permlane32_swap_b32 v{24+2*b}, v{25+2*b}
        v_add_f32 v{24+2*b}, v{24+2*b}, v{25+2*b}
        """)
    a(f"""
    s_waitcnt lgkmcnt(0)
    L_pb_chk:
    s_waitcnt vmcnt(0)
    """)
    chk(0, "s[84:85]"); chk(1, "vcc")
    a(f"""
    s_cbranch_vccz L_b1done
    s_cmp_eq_u64 s[84:85], 0
    s_cbranch_scc1 L_b0done
    s_mov_b64 exec, vcc
    """)
    for l in oloads(1): a(l)
    a("s_mov_b64 exec, s[84:85]")
    for l in oloads(0): a(l)
    a(f"""
    s_mov_b64 exec, -1
    s_sub_u32 s40, s40, 1
    s_cbranch_scc0 L_pb_chk
    L_b0done:
    s_mov_b64 exec, vcc
    """)
    for l in oloads(1): a(l)
    a("s_mov_b64 exec, -1")
    wo_mm(0); a("s_nop 6"); wo_fin(0)
    poll("L_po1", oloads(1), range(160, 176), 4, first_issued=True)
    TS(7)
    wo_mm(1); a("s_nop 6"); wo_fin(1)
    a(f"""
    s_branch L_wojoin
    L_b1done:
    s_cmp_eq_u64 s[84:85], 0
    s_cbranch_scc1 L_bothdone
    s_mov_b64 exec, s[84:85]
    """)
    for l in oloads(0): a(l)
    a("s_mov_b64 exec, -1")
    wo_mm(1); a("s_nop 6"); wo_fin(1)
    poll("L_po0", oloads(0), range(144, 160), 4, first_issued=True)
    TS(7)
    wo_mm(0); a("s_nop 6"); wo_fin(0)
    a("s_branch L_wojoin\nL_bothdone:")
    TS(7)
    wo_mm(0); wo_mm(1); wo_fin(0); wo_fin(1)
    a("L_wojoin:")
    a(f"""
    s_cmp_lg_u32 s28, 0
    s_nop 0
    v_permlane16_swap_b32 v24, v26
    v_add_f32 v24, v24, v26
    ds_write_b32 v132, v24 offset:{L_RED}
    s_mov_b32 exec_hi, 0
    s_waitcnt lgkmcnt(0)
    s_barrier ; B4
    s_cbranch_scc1 {"L_wba" if "a" in wb else "L_end2"}
    ds_read_b128 v[16:19], v133 offset:{L_RED}
    ds_read_b128 v[20:23], v133 offset:{L_RED+16}
    s_waitcnt lgkmcnt(0)
    v_pk_add_f32 v[16:17], v[16:17], v[18:19]
    v_pk_add_f32 v[20:21], v[20:21], v[22:23]
    v_pk_add_f32 v[16:17], v[16:17], v[136:137]
    v_pk_add_f32 v[16:17], v[16:17], v[20:21]
    v_cvt_pk_bf16_f32 v16, v16, v17
    v_min_u32 v16, -2, v16
    global_store_dword v134, v16, s[26:27] sc1
    """)
    TS(8)
    a("L_end2:")
    END()
    if "a" in wb:
        a("""L_wba:
        s_lshl_b32 s38, s30, 2
        s_add_u32 s38, s38, s28
        s_cmp_lg_u32 s38, 1
        s_cbranch_scc1 L_end2
        buffer_wbl2 sc1
        s_waitcnt vmcnt(0)
        s_branch L_end2""")
    oslow("w")
    a(f"""
    L_knotwo:
    v_and_b32 v120, 7, v0
    v_lshlrev_b32 v120, 7, v120
    v_add_u32 v120, {GRDY}, v120
    global_load_dword v121, v120, s[26:27] sc1
    s_cmp_ge_u32 s95, 2
    s_cbranch_scc1 L_kfinal
    """)
    a(f"""
    s_mul_i32 s39, s28, 3584
    v_lshlrev_b32 v6, 8, v3
    v_lshl_add_u32 v6, v2, 3, v6
    s_add_u32 s38, s39, {L_G}
    v_add_u32 v118, s38, v6
    v_lshlrev_b32 v8, 8, v7
    v_lshl_add_u32 v8, v2, 3, v8
    v_add_u32 v8, s38, v8
    s_lshl_b32 s38, s28, 3
    v_lshl_add_u32 v40, v2, 5, s38
    v_lshlrev_b32 v41, 5, v2
    s_mul_i32 s38, s28, 112
    v_lshl_add_u32 v9, v3, 3, s38
    v_lshl_add_u32 v10, v7, 3, s38
    v_lshlrev_b32 v42, 6, v2
    v_add_u32 v42, {HBUF}, v42
    v_lshrrev_b32 v4, 5, v9
    v_and_b32 v9, 31, v9
    v_lshl_add_u32 v9, v9, 1, v42
    v_lshl_add_u32 v9, v4, 10, v9
    v_lshrrev_b32 v4, 5, v10
    v_and_b32 v10, 31, v10
    v_lshl_add_u32 v10, v10, 1, v42
    v_lshl_add_u32 v10, v4, 10, v10
    """)
    for r in range(8): a(f"v_mov_b32 v{96+r}, {ONES if r == 0 else 'v96'}")
    diag_masks(122)
    a(f"""
    s_lshl_b32 s38, s28, 8
    v_lshl_add_u32 v119, v0, 2, s38
    v_lshrrev_b32 v42, 3, v2
    v_lshlrev_b32 v42, 7, v42
    v_lshl_add_u32 v117, v3, 4, v42
    v_lshrrev_b32 v4, 1, v3
    v_mul_u32_u24 v4, 14, v4
    v_lshrrev_b32 v42, 2, v2
    v_add_u32 v4, v4, v42
    v_mul_u32_u24 v4, 7168, v4
    v_lshl_add_u32 v4, v5, 4, v4
    s_and_b32 s43, s46, 0xffff
    s_mul_i32 s38, s28, {4*7168}
    s_lshl_b32 s41, s45, 6
    s_add_u32 s38, s38, s41
    s_add_u32 s38, s38, {PBUF}
    v_add_u32 v116, s38, v4
    """)
    grcheck("f")
    a("s_barrier ; B2b")
    ffn_w("M")
    oreduce("f")
    if pbar: a("s_barrier")
    ffn_w("L")
    hloads = [f"global_load_dwordx4 {v4(128+4*t)}, v9, s[26:27] offset:{1024*t} sc1" for t in range(3)] + \
             [f"global_load_dwordx4 v[140:143], v10, s[26:27] offset:3072 sc1"]
    if hpre:
        for l in hloads: a(l)
    a(f"s_waitcnt vmcnt({4 if hpre else 0})")
    TS(5)
    for m in range(2):
        for t in range(4):
            for hh in range(2):
                a(f"ds_read_b64_tr_b16 {v2(64+16*m+4*t+2*hh)}, v{118 if t<3 else 8} offset:{14336*m+1024*t+128*hh}")
    a("s_waitcnt lgkmcnt(0)\ns_mov_b32 exec_lo, 0")
    for r in range(4): a(f"v_mov_b32 v{76+r}, 0\nv_mov_b32 v{92+r}, 0\nv_mov_b32 v{100+r}, 0")
    a("s_mov_b32 exec_lo, -1\ns_nop 0")
    for t in range(4):
        for m in range(2): mfma(104+4*m, 96, 64+16*m+4*t, t == 0)
    a(f"""
    s_nop 6
    v_mul_f32 v104, {hex(f2u(-1/448))}, v104
    v_mul_f32 v105, {hex(f2u(-1/448))}, v108
    ds_write_b64 v40, v[104:105] offset:{L_CS}
    s_waitcnt lgkmcnt(0)
    """)
    TS(7)
    if d2: a(f"s_sleep {d2}")
    poll("L_ph", hloads, range(128, 144), 4, slp=slp2, first_issued=bool(hpre))
    TS(8)
    for t in range(4): mfma(112, 128+4*t, 96 if t < 3 else 100, t == 0)
    a(f"""
    s_barrier ; B4
    ds_read_b128 v[32:35], v41 offset:{L_CS}
    ds_read_b128 v[36:39], v41 offset:{L_CS+16}
    """)
    for t in range(4): mfma(104, 128+4*t, 64+4*t, t == 0)
    for t in range(4): mfma(108, 128+4*t, 80+4*t, t == 0)
    a(f"""
    v_pk_add_f32 v[112:113], v[112:113], v[114:115]
    s_waitcnt lgkmcnt(0)
    v_pk_add_f32 v[32:33], v[32:33], v[34:35]
    v_pk_add_f32 v[36:37], v[36:37], v[38:39]
    v_pk_add_f32 v[44:45], v[32:33], v[36:37]
    v_pk_add_f32 v[104:105], v[104:105], v[106:107]
    v_pk_fma_f32 v[104:105], v[112:113], v[44:45], v[104:105] op_sel_hi:[1,0,1]
    s_nop 0
    v_pk_add_f32 v[108:109], v[108:109], v[110:111]
    v_pk_fma_f32 v[108:109], v[112:113], v[44:45], v[108:109] op_sel:[0,1,0] op_sel_hi:[1,1,1]
    v_permlane32_swap_b32 v104, v105
    v_add_f32 v104, v104, v105
    v_permlane32_swap_b32 v108, v109
    v_add_f32 v108, v108, v109
    s_nop 1
    v_permlane16_swap_b32 v104, v108
    v_add_f32 v104, v104, v108
    ds_write_b32 v119, v104 offset:{L_RED}
    s_waitcnt lgkmcnt(0)
    s_barrier ; B5
    """)
    for w in range(4):
        for m in range(2): a(f"ds_read_b128 {v4(16+8*w+4*m)}, v117 offset:{L_RED+256*w+64*m}")
    a("s_waitcnt lgkmcnt(4)")
    for i in range(4): a(f"v_pk_add_f32 {v2(16+2*i)}, {v2(16+2*i)}, {v2(24+2*i)}")
    a("s_waitcnt lgkmcnt(0)")
    for i in range(4): a(f"v_pk_add_f32 {v2(32+2*i)}, {v2(32+2*i)}, {v2(40+2*i)}")
    for i in range(4): a(f"v_pk_add_f32 {v2(16+2*i)}, {v2(16+2*i)}, {v2(32+2*i)}")
    a("v_pk_mul_f32 v[16:17], v[16:17], v[20:21]\nv_pk_mul_f32 v[18:19], v[18:19], v[22:23]")
    for i in range(4): a(f"v_cvt_pk_bf16_f32 v{16+i}, v{16+i}, v{16+i}")
    for i in range(4):
        for r in range(4): a(f"v_and_b32 v{64+4*i+r}, v{16+i}, v{122+r}")
        if i: mfma(104, 64+4*(i-1), 48+4*(i-1), i == 1)
    a("s_nop 0")
    mfma(104, 76, 60, False)
    a(f"""
    s_nop 7
    v_cvt_pk_bf16_f32 v104, v104, v105
    v_cvt_pk_bf16_f32 v105, v106, v107
    v_min_u32 v104, -2, v104
    v_min_u32 v105, -2, v105
    s_nop 0
    v_permlane16_swap_b32 v104, v106
    v_permlane16_swap_b32 v105, v107
    s_mov_b32 exec_lo, s43
    s_mov_b32 exec_hi, s43
    global_store_dwordx4 v116, v[104:107], s[26:27] sc1
    """)
    TS(9)
    END()
    oslow("f")
    a("L_kfinal:\ns_barrier ; B2b\ns_waitcnt vmcnt(1)")
    oreduce("z")
    if "b" in wb:
        a("""s_lshl_b32 s38, s30, 2
        s_add_u32 s38, s38, s28
        s_cmp_lg_u32 s38, 61
        s_cbranch_scc1 L_nowbb
        buffer_wbl2 sc1
        L_nowbb:""")
    a(f"""
    s_cmp_eq_u32 s95, 3
    s_cbranch_scc1 L_end2
    """)
    diag_masks(40)
    a(f"""
    v_lshrrev_b32 v6, 3, v2
    v_cmp_eq_u32 vcc, v6, v7
    v_mov_b32 v6, {ONES}
    v_and_b32 v44, v40, v6
    v_and_b32 v45, v41, v6
    v_and_b32 v46, v42, v6
    v_and_b32 v47, v43, v6
    v_cndmask_b32 v40, 0, v44, vcc
    v_cndmask_b32 v41, 0, v45, vcc
    v_cndmask_b32 v42, 0, v46, vcc
    v_cndmask_b32 v43, 0, v47, vcc
    v_lshrrev_b32 v9, 2, v2
    v_lshlrev_b32 v9, 10, v9
    v_lshl_add_u32 v9, v3, 6, v9
    v_lshl_add_u32 v9, v5, 4, v9
    s_lshl_b32 s38, s28, 12
    s_add_u32 s38, s38, {HBUF}
    v_add_u32 v9, s38, v9
    v_lshrrev_b32 v10, 1, v3
    v_mul_u32_u24 v10, 896, v10
    v_lshl_add_u32 v10, v2, 4, v10
    v_lshl_add_u32 v10, v7, 3, v10
    s_lshl_b32 s38, s28, 8
    v_add_u32 v10, s38, v10
    """)
    grcheck("z")
    if d2: a(f"s_sleep {d2+30}")
    poll("L_ph2", [f"global_load_dwordx4 {v4(16+4*t)}, v9, s[26:27] offset:{256*t} sc1" for t in range(4)], range(16, 32), 4,
         mask=("s46", "s46"), slp=slp2f)
    TS(7)
    for t in range(4): mfma(48, 40, 16+4*t, t == 0)
    a(f"""
    s_mov_b32 exec_lo, s46
    s_mov_b32 exec_hi, s46
    s_nop 5
    v_cvt_pk_bf16_f32 v48, v48, v49
    v_cvt_pk_bf16_f32 v49, v50, v51
    ds_write_b64 v10, v[48:49] offset:{L_XN}
    s_mov_b64 exec, -1
    s_waitcnt lgkmcnt(0)
    s_barrier ; B4
    s_cmp_lg_u32 s28, 0
    s_cbranch_scc1 L_epoch
    v_and_b32 v4, 31, v0
    v_cmp_gt_u32 s[36:37], 28, v4
    s_cmp_ge_u32 s44, 14
    s_cselect_b32 s38, 896, 0
    v_lshl_add_u32 v12, v4, 5, s38
    """)
    for i in range(8): a(f"v_mov_b32 v{16+i}, 0")
    a(f"""
    v_lshlrev_b32 v13, 4, v5
    v_lshl_add_u32 v13, v7, 3, v13
    s_lshl_b32 s38, s44, 6
    v_add_u32 v13, s38, v13
    ds_read_b64 v[60:61], v13 offset:{L_XN}
    s_mov_b64 exec, s[36:37]
    ds_read_b128 v[16:19], v12 offset:{L_XN}
    ds_read_b128 v[20:23], v12 offset:{L_XN+16}
    s_mov_b64 exec, -1
    s_mul_i32 s38, s44, 7168
    s_add_u32 s38, s38, {PBUF+4096}
    v_lshl_add_u32 v9, v0, 4, s38
    s_waitcnt lgkmcnt(0)
    """)
    ln_stats(16, 64, 48, 50, 51)
    a(f"""
    v_rcp_f32 v50, v50
    v_and_b32 v63, s94, v61
    v_lshlrev_b32 v62, 16, v61
    v_and_b32 v61, s94, v60
    v_lshlrev_b32 v60, 16, v60
    v_mul_f32 v50, v50, v50
    """)
    TS(8)
    if d3: a(f"s_sleep {d3}")
    poll("L_pp", [f"global_load_dwordx4 {v4(64+4*t)}, v9, s[26:27] offset:{1024*t-4096} sc1" for t in range(7)], range(64, 92), 4, slp=slp3)
    TS(5)
    for t in range(7): mfma(16, 44, 64+4*t, t == 0)
    a("s_nop 7")
    for n in (4, 8):
        for r in range(4): a(f"v_add_f32_dpp v{16+r}, v{16+r}, v{16+r} row_ror:{n} row_mask:0xf bank_mask:0xf")
    a(f"""
    s_mov_b64 exec, 0x000f000f
    v_pk_mul_f32 v[16:17], v[16:17], v[50:51] op_sel_hi:[1,0]
    v_pk_mul_f32 v[18:19], v[18:19], v[50:51] op_sel_hi:[1,0]
    v_cvt_pk_bf16_f32 v16, v16, v17
    v_cvt_pk_bf16_f32 v18, v18, v19
    v_and_b32 v17, s94, v16
    v_lshlrev_b32 v16, 16, v16
    v_and_b32 v19, s94, v18
    v_lshlrev_b32 v18, 16, v18
    v_pk_add_f32 v[16:17], v[16:17], v[60:61]
    v_pk_add_f32 v[18:19], v[18:19], v[62:63]
    v_cvt_pk_bf16_f32 v16, v16, v17
    v_cvt_pk_bf16_f32 v17, v18, v19
    global_store_dwordx2 v13, v[16:17], s[22:23] {ofl}
    """)
    TS(9)
    END()
    a(f"""
    L_epoch:
    s_lshl_b32 s38, s44, 2
    s_add_u32 s38, s38, s28
    s_cmp_lg_u32 s38, 1
    s_cbranch_scc1 L_end2
    v_mov_b32 v15, 0
    v_mov_b32 v14, s33
    s_mov_b64 exec, 1
    global_store_dword v15, v14, s[26:27] offset:{EPOCH} {efl}
    s_branch L_end2
    """)
    oslow("z")
    if ts and diag:
        wg, wv, i0, i1 = diag
        a(f"""
        L_tsout:
        s_memrealtime s[80:81]
        s_cmp_lg_u32 s2, {wg}
        s_cbranch_scc1 L_dend
        s_cmp_lg_u32 s28, {wv}
        s_cbranch_scc1 L_dend
        s_waitcnt lgkmcnt(0)
        s_sub_u32 s38, s{60+2*i1}, s{60+2*i0}
        s_min_u32 s38, s38, 5000
        s_add_u32 s38, s38, 6000
        L_dspin:
        s_memrealtime s[82:83]
        s_waitcnt lgkmcnt(0)
        s_sub_u32 s39, s82, s60
        s_cmp_lt_u32 s39, s38
        s_cbranch_scc1 L_dspin
        L_dend:
        s_endpgm
        """)
    elif ts:
        a(f"""
        L_tsout:
        s_memrealtime s[80:81]
        {"s_sleep 100" if ts != 3 else ""}
        s_mov_b64 exec, 1
        s_lshl_b32 s38, s2, 3
        s_add_u32 s38, s38, s28
        s_lshl_b32 s38, s38, 6
        s_add_u32 s38, s38, {TSBUF}
        v_mov_b32 v4, s38
        s_mov_b32 s82, s48
        s_waitcnt lgkmcnt(0)
        """)
        for i in range(12): a(f"v_mov_b32 v{16+i}, s{60+2*i}")
        for i in range(3): a(f"global_store_dwordx4 v4, {v4(16+4*i)}, s[26:27] offset:{16*i}")
        a("s_endpgm")
    if skip:
        def drop(t):
            if "q" in skip and "s[10:11]" in t and t.startswith("global_load"): return True
            if "c" in skip and t.startswith("global_store_dwordx4 v13, v[24:27]"): return True
            if "d" in skip and t.startswith("global_load") and "s[20:21]" in t: return True
            if "o" in skip and t.startswith("global_load_lds") and "s[12:13]" in t and " v9," not in t: return True
            if "f" in skip and t.startswith("global_load_lds") and ("s[16:17]" in t or "s[18:19]" in t): return True
            if "p" in skip and t.startswith("global_store") and ("v4, v[32:35]" in t or "v7, v36" in t): return True
            return False
        a.items = [(k, "s_nop 0" if drop(t) else t, n) for k, t, n in a.items]
    sz0 = 0
    for (k, t, n), in zip(a.items):
        pass
    if hop:
        nb, size = insert_pads(a, lambda n, nb: f"Lpad{n+3}" if n + 3 < nb else "L_back")
    errs = check_hazards(a.items)
    for e in errs: print(e, file=sys.stderr)
    hdr = open("cdna_kernels/" + KNAME[:-7] + ".s.ref").read().split("; Override")[0]
    return f"""{hdr}; @launch grid=(256,1,1) block=(512,1,1) lds={LDS_BYTES}
.amdgcn_target "amdgcn-amd-amdhsa--gfx950"
.text
.globl {KNAME}
.p2align 10
.fill 64, 4, 0xbf810000
.p2align 8
.type {KNAME},@function
{KNAME}:
{a.text()}
.section .rodata,"a"
.p2align 6
.amdhsa_kernel {KNAME}
  .amdhsa_next_free_vgpr 256
  .amdhsa_next_free_sgpr 96
  .amdhsa_accum_offset 256
  .amdhsa_group_segment_fixed_size 0
  .amdhsa_kernarg_size 96
  .amdhsa_user_sgpr_count 2
  .amdhsa_user_sgpr_kernarg_segment_ptr 1
  .amdhsa_system_sgpr_workgroup_id_x 1
  .amdhsa_float_denorm_mode_32 3
.end_amdhsa_kernel
"""

if __name__ == "__main__":
    kw = {}
    out = sys.argv[1]
    for x in sys.argv[2:]:
        k, v = x.split("=")
        kw[k] = eval(v) if v[:1].isdigit() or v[:1] == "(" or v in ("True", "False") else v.replace("+", " ")
    open(out, "w").write(gen(**kw))
```
